```python
import torch

def _softmax(x, axis=-1):
    return torch.softmax(x, dim=axis)
def _gelu(x):
    return torch.nn.functional.gelu(x, approximate="tanh")
def _silu(x):
    return torch.nn.functional.silu(x)
def _sigmoid(x):
    return torch.sigmoid(x)
def _layernorm(x, axis=-1, eps=1e-5):
    m = x.mean(dim=axis, keepdim=True)
    v = x.var(dim=axis, keepdim=True, unbiased=False)
    return (x - m) / torch.sqrt(v + eps)
def _scatter_add(tgt, idx, src, axis=0):
    return tgt.clone().index_add_(axis, idx, src)
def _segment_sum(src, seg, n):
    out = torch.zeros((n,) + src.shape[1:], dtype=src.dtype)
    return out.index_add_(0, seg, src)
def _pad(x, pw):
    flat = tuple(v for pair in reversed(pw) for v in pair)
    return torch.nn.functional.pad(x, flat)

kernel_name = 'recurrent_scan__sliding_block__mixer_s_mlp__prompt'

def setup_inputs():

    _w = (lambda a: (lambda t: t.to(torch.bfloat16) if t.is_floating_point() else t)(torch.as_tensor(a)))
    def _A_setup():
        B, S, D = 1, 2048, 512
        return {
            "x": _w((lambda *s: torch.randn(*s, dtype=torch.bfloat16) * 0.05)(B, S, D)),
            "wqkv": _w((lambda *s: torch.randn(*s, dtype=torch.bfloat16) * 0.05)(D, 3 * D)),
            "wo": _w((lambda *s: torch.randn(*s, dtype=torch.bfloat16) * 0.05)(D, D)),
        }
    _A_in = _A_setup()

    def _B_setup():
        B, S, D, F = 1, 2048, 512, 1792
        return {
            "x":  _w((lambda *s: torch.randn(*s, dtype=torch.bfloat16) * 0.05)(B, S, D)),
            "w1": _w((lambda *s: torch.randn(*s, dtype=torch.bfloat16) * 3.2)(D, D) * (D ** -0.5)),
            "w2": _w((lambda *s: torch.randn(*s, dtype=torch.bfloat16) * 3.2)(D, D) * (D ** -0.5)),
            "w3": _w((lambda *s: torch.randn(*s, dtype=torch.bfloat16) * 3.2)(D, F) * (D ** -0.5)),
            "w4": _w((lambda *s: torch.randn(*s, dtype=torch.bfloat16) * 1.6)(F, D) * (F ** -0.5)),
        }
    _B_in = _B_setup()

    return {
        "A_x": _A_in["x"],
        "A_wqkv": _A_in["wqkv"],
        "A_wo": _A_in["wo"],
        "B_x": _B_in["x"],
        "B_w1": _B_in["w1"],
        "B_w2": _B_in["w2"],
        "B_w3": _B_in["w3"],
        "B_w4": _B_in["w4"],
    }

def reference(A_x, A_wqkv, A_wo, B_x, B_w1, B_w2, B_w3, B_w4):
    def _A_ref(x, wqkv, wo):
        B, S, D = x.shape
        H = 32; Dh = D // H; W = 256
        qkv = (lambda x, *d: x.permute(*d))((x @ wqkv).reshape(B, S, 3, H, Dh), 2, 0, 3, 1, 4)
        q, k, v = qkv[0], qkv[1], qkv[2]
        scores = torch.einsum("bhqd,bhkd->bhqk", q, k) * (Dh ** -0.5)
        idx = torch.arange(S)
        mask = (idx[:, None] - idx[None, :] >= 0) & (idx[:, None] - idx[None, :] < W)
        scores = torch.where(mask[None, None], scores, -1e9)
        p = _softmax(scores, axis=-1)
        o = torch.einsum("bhqk,bhkd->bhqd", p, v)
        return (lambda x, *d: x.permute(*d))(o, 0, 2, 1, 3).reshape(B, S, D) @ wo

    def _B_ref(x, w1, w2, w3, w4):
        B, S, D = x.shape
        h = _gelu(_layernorm(x, axis=-1) @ w1)
        c = D // 4
        g0 = _pad(h[:, :, 0*c:1*c], ((0, 0), (1, 0), (0, 0)))[:, :S, :]
        g1 = _pad(h[:, :, 1*c:2*c], ((0, 0), (0, 1), (0, 0)))[:, 1:, :]
        g2 = _pad(h[:, :, 2*c:3*c], ((0, 0), (2, 0), (0, 0)))[:, :S, :]
        g3 = _pad(h[:, :, 3*c:   ], ((0, 0), (0, 2), (0, 0)))[:, 2:, :]
        hs = torch.concatenate([g0, g1, g2, g3], axis=-1) @ w2
        x1 = x + hs
        h2 = _gelu(_layernorm(x1, axis=-1) @ w3) @ w4
        return x1 + h2

    x = A_x
    xn = _layernorm(x, axis=-1)
    s = _A_ref(xn, A_wqkv, A_wo)
    g = _silu(_B_ref(xn, B_w1, B_w2, B_w3, B_w4))
    return x + s * g
```

```python
import re

def parse_reg(tok):
    tok = tok.strip()
    neg = False
    m = re.fullmatch(r'-?(?:abs\()?\|?([vsa])(\d+)\|?\)?', tok)
    if m:
        return [(m.group(1), int(m.group(2)))]
    m = re.fullmatch(r'-?([vsa])\[(\d+):(\d+)\]', tok)
    if m:
        return [(m.group(1), i) for i in range(int(m.group(2)), int(m.group(3)) + 1)]
    if tok == 'vcc':
        return [('s', 'vcc_lo'), ('s', 'vcc_hi')]
    if tok in ('vcc_lo', 'vcc_hi'):
        return [('s', tok)]
    if tok == 'exec':
        return [('s', 'exec_lo'), ('s', 'exec_hi')]
    if tok in ('exec_lo', 'exec_hi'):
        return [('s', tok)]
    if tok == 'm0':
        return [('s', 'm0')]
    return None

TRANS = ('v_exp_f32', 'v_log_f32', 'v_rcp_f32', 'v_rsq_f32', 'v_sqrt_f32', 'v_sin_f32', 'v_cos_f32')
RMW_DST = ('v_fmac_f32', 'v_dot2c_f32_bf16', 'v_pk_fmac_f16', 'v_fmaak_f32x')

def split_ops(s):
    out, depth, cur = [], 0, ''
    for ch in s:
        if ch in '[(':
            depth += 1
        if ch in '])':
            depth -= 1
        if ch == ',' and depth == 0:
            out.append(cur.strip()); cur = ''
        else:
            cur += ch
    if cur.strip():
        out.append(cur.strip())
    return out

class Ins:
    __slots__ = ('text', 'op', 'defs', 'uses', 'cls', 'srcC', 'srcAB', 'passes', 'states', 'label', 'target',
                 'store_data', 'is_lds_dma', 'comment')
    def __init__(self, text):
        self.text = text
        self.label = None
        self.target = None
        self.defs = set(); self.uses = set()
        self.srcC = set(); self.srcAB = set(); self.passes = 0
        self.store_data = set(); self.is_lds_dma = False
        self.states = 1
        t = text.split(';')[0].strip()
        if t.endswith(':'):
            self.label = t[:-1]; self.op = 'label'; self.cls = 'label'; self.states = 0
            return
        if t.startswith('.') or t == '':
            self.op = 'directive'; self.cls = 'dir'; self.states = 0
            return
        parts = t.split(None, 1)
        op = parts[0]
        op = re.sub(r'_e(32|64)$', '', op)
        self.op = op
        rest = parts[1] if len(parts) > 1 else ''
        ops = split_ops(rest)
        mods = ''
        if ops:
            last = ops[-1].split(None, 1) if ' ' in ops[-1] and not ops[-1].startswith('hwreg') else [ops[-1]]
            if len(last) > 1:
                ops[-1] = last[0]; mods = last[1]
        regs = [parse_reg(o) for o in ops]
        def R(i):
            return set(regs[i]) if i < len(regs) and regs[i] else set()
        allr = set()
        for i in range(len(ops)):
            allr |= R(i)
        if op.startswith('v_mfma'):
            self.cls = 'mfma'
            self.defs = R(0); self.srcAB = R(1) | R(2); self.srcC = R(3)
            self.uses = self.srcAB | self.srcC
            self.passes = 8 if '32x32' in op else 4
        elif op.startswith('v_'):
            self.cls = 'valu'
            if op in TRANS:
                self.cls = 'trans'
            if op.startswith('v_cmp'):
                self.defs = R(0); self.uses = set().union(*[R(i) for i in range(1, len(ops))])
            elif op in ('v_permlane32_swap_b32', 'v_permlane16_swap_b32'):
                self.defs = R(0) | R(1); self.uses = R(0) | R(1); self.cls = 'permlane'
            elif op in ('v_add_co_u32', 'v_sub_co_u32', 'v_addc_co_u32'):
                self.defs = R(0) | R(1); self.uses = set().union(*[R(i) for i in range(2, len(ops))])
            else:
                self.defs = R(0)
                self.uses = set().union(*[R(i) for i in range(1, len(ops))]) if len(ops) > 1 else set()
                if op in RMW_DST:
                    self.uses |= R(0)
                if op in ('v_readfirstlane_b32', 'v_readlane_b32'):
                    self.cls = 'readlane'
                if op == 'v_writelane_b32':
                    self.uses |= R(0)
            if 'dpp' in op or 'row_' in mods or 'quad_perm' in mods:
                self.cls = 'dpp'
            if op == 'v_nop':
                self.defs = set(); self.uses = set()
        elif op.startswith('ds_'):
            self.cls = 'ds'
            if op.startswith('ds_read') or op.startswith('ds_bpermute') or op.startswith('ds_swizzle') or op.startswith('ds_permute'):
                self.defs = R(0); self.uses = set().union(*[R(i) for i in range(1, len(ops))])
            elif '_rtn' in op:
                self.defs = R(0); self.uses = set().union(*[R(i) for i in range(1, len(ops))])
            else:
                self.uses = allr
        elif op.startswith('buffer_') or op.startswith('global_') or op.startswith('flat_'):
            self.cls = 'vmem'
            if re.search(r'\blds\b', t) or 'load_lds' in op:
                self.is_lds_dma = True
                self.uses = allr | {('s', 'm0')}
            elif '_load' in op:
                self.defs = R(0); self.uses = set().union(*[R(i) for i in range(1, len(ops))])
            elif '_store' in op:
                self.uses = allr
                d = R(0) if op.startswith('buffer_') else R(1)
                if 'x4' in op or 'x3' in op:
                    self.store_data = d
            elif '_atomic' in op:
                self.uses = allr
                if re.search(r'\bsc0\b', t):
                    self.defs = R(0)
            else:
                self.uses = allr
        elif op.startswith('s_'):
            self.cls = 'salu'
            if op == 's_nop':
                self.states = int(ops[0], 0) + 1
                self.cls = 'nop'
            elif op in ('s_branch',) or op.startswith('s_cbranch'):
                self.cls = 'branch'; self.target = ops[0]
                if 'vcc' in op:
                    self.uses = {('s', 'vcc_lo'), ('s', 'vcc_hi')}
            elif op.startswith('s_cmp') or op.startswith('s_bitcmp'):
                self.uses = allr
            elif op in ('s_waitcnt', 's_barrier', 's_endpgm', 's_setprio', 's_sleep'):
                pass
            elif op.startswith('s_load') or op.startswith('s_memtime') or op.startswith('s_memrealtime') or op.startswith('s_buffer_load'):
                self.cls = 'smem'
                self.defs = R(0); self.uses = set().union(*[R(i) for i in range(1, len(ops))]) if len(ops) > 1 else set()
            elif op.endswith('saveexec_b64'):
                self.defs = R(0) | {('s', 'exec_lo'), ('s', 'exec_hi')}; self.uses = R(1) | {('s', 'exec_lo'), ('s', 'exec_hi')}
            else:
                self.defs = R(0)
                self.uses = set().union(*[R(i) for i in range(1, len(ops))]) if len(ops) > 1 else set()
                if op in ('s_addk_i32', 's_mulk_i32', 's_cmov_b32'):
                    self.uses |= R(0)
        else:
            raise ValueError('unknown instruction: ' + text)

def is_valu(i):
    return i.cls in ('valu', 'trans', 'permlane', 'dpp', 'readlane')

def vregs(s):
    return {r for r in s if r[0] in ('v', 'a')}
def sregs(s):
    return {r for r in s if r[0] == 's'}

def required(p, c):
    need = 0
    pv, cv = is_valu(p), is_valu(c)
    if pv and c.cls == 'mfma' and (vregs(p.defs) & c.uses):
        need = max(need, 2)
    if p.cls == 'mfma':
        big = p.passes == 8
        if c.cls == 'mfma':
            if p.defs & c.srcC:
                if p.defs == c.srcC and p.passes == c.passes:
                    pass
                else:
                    need = max(need, 10 if big else 6)
            if p.defs & c.srcAB:
                need = max(need, 12 if big else 8)
            if (p.defs & c.defs) and not (p.defs & c.srcC):
                need = max(need, 10 if big else 6)
        else:
            if cv or c.cls in ('ds', 'vmem'):
                if p.defs & (c.uses | c.defs):
                    need = max(need, 12 if big else 8)
            if cv and (p.srcC & c.defs):
                need = max(need, 7 if big else 3)
            if c.cls in ('ds', 'vmem') and (p.srcC & c.defs):
                need = max(need, 7 if big else 3)
    if p.op.startswith('v_dot') and (p.defs & (c.uses | c.defs)):
        if c.op == p.op:
            ab = c.uses - c.defs
            if p.defs & ab: need = max(need, 3)
        else:
            need = max(need, 3)
    if p.cls == 'trans' and cv and c.cls != 'trans' and (p.defs & c.uses):
        need = max(need, 1)
    if p.cls == 'trans' and c.cls == 'trans' and (p.defs & c.uses):
        need = max(need, 1)
    if pv and sregs(p.defs):
        w = sregs(p.defs)
        if cv and (w & c.uses):
            need = max(need, 2)
            if c.cls == 'readlane':
                need = max(need, 4)
        if c.cls == 'vmem' and (w & c.uses):
            need = max(need, 5)
        if c.cls in ('salu', 'branch', 'smem') and (w & c.uses):
            need = max(need, 2)
    if pv and c.cls == 'readlane' and (vregs(p.defs) & c.uses):
        need = max(need, 1)
    if pv and c.cls in ('permlane', 'dpp') and (vregs(p.defs) & c.uses):
        need = max(need, 2)
    if p.cls == 'salu' and ('s', 'm0') in p.defs and c.is_lds_dma:
        need = max(need, 1)
    if p.store_data:
        if p.store_data & c.defs:
            need = max(need, 2 if cv else 1)
    if p.cls == 'salu' and (('s', 'exec_lo') in p.defs or ('s', 'exec_hi') in p.defs):
        if c.cls in ('dpp', 'permlane', 'readlane', 'mfma'):
            need = max(need, 4)
    return need

LOOKBACK = 24

class Prog:
    def __init__(self):
        self.ins = []
    def __call__(self, text):
        for line in text.split('\n'):
            line = line.strip()
            if not line:
                continue
            if line.startswith(';'):
                i = Ins(''); i.text = line; self.ins.append(i); continue
            self.ins.append(Ins(line))
    def label(self, name):
        self.ins.append(Ins(name + ':'))
    def extend(self, other):
        self.ins.extend(other.ins)

    def fix_hazards(self):
        out = []
        hist = []
        nfix = 0
        for c in self.ins:
            if c.states == 0:
                out.append(c)
                continue
            if c.cls != 'nop':
                need = 0
                d = 0
                for p in reversed(hist):
                    if d >= LOOKBACK:
                        break
                    r = required(p, c)
                    if r - d > need:
                        need = r - d
                    d += p.states
                while need > 0:
                    n = min(need, 16)
                    nop = Ins('s_nop %d' % (n - 1))
                    out.append(nop); hist.append(nop); nfix += 1
                    need -= n
            out.append(c); hist.append(c)
            if c.op in ('s_branch', 's_endpgm'):
                hist = []
        self.ins = out
        self.check_edges()
        return nfix

    def check_edges(self):
        pos = {i.label: k for k, i in enumerate(self.ins) if i.label}
        for k, b in enumerate(self.ins):
            if b.cls != 'branch':
                continue
            if b.target not in pos:
                raise ValueError('unknown label ' + str(b.target))
            ctx = []
            d = 0
            j = k
            while j >= 0 and d < LOOKBACK:
                x = self.ins[j]
                if x.states > 0:
                    ctx.append(x); d += x.states
                    if x is not b and x.op in ('s_branch', 's_endpgm'):
                        break
                j -= 1
            ctx.reverse()
            j = pos[b.target]
            dd = 0
            seq = list(ctx)
            while j < len(self.ins) and dd < LOOKBACK:
                c = self.ins[j]
                if c.states > 0:
                    dist = 0
                    for p in reversed(seq):
                        if dist >= LOOKBACK:
                            break
                        if p in ctx:
                            r = required(p, c)
                            if r > dist:
                                raise ValueError('hazard across branch to %s: [%s] -> [%s] needs %d has %d' % (b.target, p.text, c.text, r, dist))
                        dist += p.states
                    seq.append(c); dd += c.states
                    if c.op in ('s_branch', 's_endpgm'):
                        break
                j += 1

    def text(self):
        lines = []
        for i in self.ins:
            if i.label:
                lines.append(i.text)
            else:
                lines.append('  ' + i.text)
        return '\n'.join(lines) + '\n'
```

```python
import sys, math, struct
sys.path.insert(0, 'gen')
from asmlib import Prog

NAME = 'recurrent_scan__sliding_block__mixer_s_mlp__prompt'

def f2u(x):
    return struct.unpack('<I', struct.pack('<f', x))[0]
def hexf(x):
    return '0x%08x' % f2u(x)

MB = 1 << 20
G_OFF, Q_OFF, K_OFF, V_OFF, X1_OFF, O_OFF, H2_OFF = 0, 2*MB, 4*MB, 6*MB, 8*MB, 10*MB, 12*MB
FL_OFF = 20*MB
FG_OFF = FL_OFF
FQ_OFF = FL_OFF + 0x2000
FX_OFF = FL_OFF + 0x4000
FO_OFF = FL_OFF + 0x6000
FH_OFF = FL_OFF + 0x8000
EP_OFF = FL_OFF + 0x10000
WS_REC = 32*MB

NA, NB = 4, 5
SLOT_A, SLOT_B = 17408, 16384
RA = 0
RB = NA*SLOT_A
QL = RB + NB*SLOT_B
TBL = QL + 8192
T_RSTD, T_MR, T_RSTDB, T_MRB = TBL, TBL+512, TBL+1024, TBL+1536
T_CS = TBL + 2048
T_EP = TBL + 2560
LDS_BYTES = 163840

S_X, S_WQKV, S_WO, S_W1, S_W2, S_W3, S_W4, S_OUT, S_WS, S_DBG = [4+4*i for i in range(10)]
def srd(b): return 's[%d:%d]' % (b, b+3)
sW, sV, sJ, sR, sC, sHP, sRA, sHEAD, sQB, sR3, sC3, sSH, sEP, sIDLE, sA = range(44, 59)
sROLE = 59
sT0, sT1, sT2, sT3, sT4, sT5 = range(60, 66)
sNMIN = 66
sB0 = 68
sP0 = 80

CFG = dict(stop_after=99, sc1=True, dbg_stamps=False)

def sc():
    return ' sc1' if CFG['sc1'] else ''

class Chunk:
    def __init__(self, kind, t, dep=None, earliest=-1, n=8, **kw):
        self.kind, self.t, self.dep, self.earliest, self.n = kind, t, dep, earliest, n
        self.kw = kw

def build_steps():
    steps = []
    def add(task, t, A, B): steps.append(dict(task=task, t=t, A=A, B=B))
    for t in range(4): add('B1', t, Chunk('x68', t, n=9), Chunk('w64', t, srd=S_W1))
    for t in range(8): add('A1', t, Chunk('x128', t), Chunk('wqkv', t, n=6))
    for t in range(4): add('B2', t, Chunk('blk64', t, dep='FG', base=G_OFF, KB=32), Chunk('w64', t, srd=S_W2))
    add('A2', 0, Chunk('kq', 0, dep='FQ', n=12), Chunk('v', 0, dep='FQ'))
    for t in range(8): add('B3', t, Chunk('x1', t, dep='FX'), Chunk('w3', t))
    for t in range(4): add('A3', t, Chunk('blk64', t, dep='FO', base=O_OFF, KB=32), Chunk('w64', t, srd=S_WO))
    for t in range(14): add('B4', t, Chunk('blk64', t, dep='FH', base=H2_OFF, KB=112), Chunk('w64', t, srd=S_W4))
    return steps

STEPS = build_steps()
IDX = {}
for i, s in enumerate(STEPS):
    IDX.setdefault(s['task'], i)
def set_earliest():
    for i, s in enumerate(STEPS):
        for ring in 'AB':
            ch = s[ring]
            if ch.dep == 'FG': ch.earliest = IDX['A1'] + 3
            if ch.dep == 'FQ': ch.earliest = IDX['B2'] + 2
            if ch.dep == 'FX': ch.earliest = IDX['A2']
            if ch.dep == 'FO': ch.earliest = IDX['B3'] + 2
            if ch.dep == 'FH': ch.earliest = IDX['A3'] + 1
set_earliest()
SIGNAL_STEP = dict(FG=IDX['A1'] + 1, FQ=IDX['B2'] + 1, FX=IDX['A2'], FO=IDX['B3'] + 1, FH=IDX['A3'] + 1)

def schedule(ring, N, nsteps):
    issue = {t: [] for t in range(-1, nsteps)}
    done = set()
    for t in range(-1, nsteps):
        for idx in range(nsteps):
            if idx in done: continue
            ch = STEPS[idx][ring]
            if idx <= t + N - 1 and ch.earliest <= t:
                issue[t].append(idx); done.add(idx)
    for idx in range(nsteps):
        assert idx in done, (ring, idx)
        it = [t for t in issue if idx in issue[t]][0]
        assert it <= idx - 1, ('chunk issued too late', ring, idx, it)
        d = STEPS[idx][ring].dep
        if d: assert SIGNAL_STEP[d] <= it, ('deadlock risk', d, SIGNAL_STEP[d], it)
    return issue

def slot_addr(ring, idx):
    return (RA + (idx % NA)*SLOT_A) if ring == 'A' else (RB + (idx % NB)*SLOT_B)


def emit_prologue(p):
    p(f"""
    s_cmp_ge_u32 s2, 256
    s_cbranch_scc1 L_END
    s_load_dwordx16 s[64:79], s[0:1], 0
    s_load_dwordx4 s[80:83], s[0:1], 64
    s_load_dwordx2 s[84:85], s[0:1], 80
    v_lshrrev_b32 v2, 6, v0
    v_and_b32 v1, 63, v0
    v_readfirstlane_b32 s{sW}, v2
    s_and_b32 s{sV}, s2, 7
    s_lshr_b32 s{sJ}, s2, 3
    s_lshr_b32 s{sT0}, s{sJ}, 3
    s_lshl_b32 s{sT1}, s{sV}, 2
    s_add_u32 s{sR}, s{sT1}, s{sT0}
    s_mov_b32 s{sHEAD}, s{sR}
    s_and_b32 s{sC}, s{sJ}, 7
    s_mov_b32 s{sQB}, s{sC}
    s_lshr_b32 s{sT0}, s{sJ}, 4
    s_lshl_b32 s{sT1}, s{sV}, 1
    s_add_u32 s{sHP}, s{sT1}, s{sT0}
    s_and_b32 s{sRA}, s{sJ}, 15
    s_cmp_ge_u32 s{sJ}, 14
    s_cselect_b32 s{sT0}, 1, 0
    s_add_u32 s{sR3}, s{sT1}, s{sT0}
    s_mul_i32 s{sT0}, s{sT0}, 14
    s_sub_u32 s{sC3}, s{sJ}, s{sT0}
    s_cmp_ge_u32 s{sJ}, 28
    s_cselect_b32 s{sIDLE}, 1, 0
    s_lshr_b32 s{sT0}, s{sC}, 1
    s_lshr_b32 s{sT1}, s{sT0}, 1
    s_add_u32 s{sT1}, s{sT1}, 1
    s_sub_u32 s{sT2}, 0, s{sT1}
    s_bitcmp1_b32 s{sT0}, 0
    s_cselect_b32 s{sSH}, s{sT2}, s{sT1}
    s_and_b32 s{sA}, s{sW}, 1
    s_waitcnt lgkmcnt(0)
    """)
    for (d, src_, n) in [(S_X, 64, 2097152), (S_WQKV, 66, 1572864), (S_WO, 68, 524288), (S_W1, 72, 524288),
                         (S_W2, 74, 524288), (S_W3, 76, 1835008), (S_W4, 78, 1835008), (S_OUT, 80, 2097152),
                         (S_WS, 84, WS_REC), (S_DBG, 82, 256)]:
        p(f"""
        s_mov_b32 s{d}, s{src_}
        s_and_b32 s{d+1}, s{src_+1}, 0xffff
        s_mov_b32 s{d+2}, {n}
        s_mov_b32 s{d+3}, 0x20000
        """)
    p(f"""
    s_cmp_lt_u32 s{sW}, 4
    s_cbranch_scc1 L_COMPUTE
    s_cmp_lt_u32 s{sW}, 6
    s_cbranch_scc1 L_LOADA
    s_branch L_LOADB
    """)

class VmTrack:
    def __init__(self): self.ops = []
    def add(self, tag, n=1): self.ops += [tag]*n
    def wait_count(self, tag):
        last = -1
        for i, t in enumerate(self.ops):
            if t == tag: last = i
        if last < 0: return None
        return len(self.ops) - 1 - last
    def waited(self, cnt):
        self.ops = self.ops[len(self.ops)-cnt:] if cnt > 0 else []
    def emit_wait(self, p, tag):
        c = self.wait_count(tag)
        if c is None: return
        assert c <= 63, c
        p(f's_waitcnt vmcnt({c})')
        self.waited(c)

uid = [0]
def newlabel(s):
    uid[0] += 1
    return f'L_{s}_{uid[0]}'

def emit_poll(p, vm, dep, vtmp, voff):
    L = newlabel('poll'); D = newlabel('polld')
    p(f"""
    s_mov_b32 s{sT5}, 0x10000
    {L}:
    buffer_load_dword v{vtmp}, v{voff}, {srd(S_WS)}, 0 offen sc1
    s_waitcnt vmcnt(0)
    v_cmp_ne_u32 vcc, s{sEP}, v{vtmp}
    s_cbranch_vccz {D}
    s_sub_u32 s{sT5}, s{sT5}, 1
    s_cmp_eq_u32 s{sT5}, 0
    s_cbranch_scc1 {D}
    s_sleep 1
    s_branch {L}
    {D}:
    """)
    vm.waited(0)

def emit_signal(p, soff_expr_setup, vep):
    p(soff_expr_setup)
    p(f"""
    s_mov_b64 exec, 1
    buffer_store_dword v{vep}, off, {srd(S_WS)}, s{sT4}{sc()}
    s_mov_b64 exec, -1
    """)

sHW = 67
C_GELU1 = -2.0*math.log2(math.e)*math.sqrt(2.0/math.pi)
C_GELU2 = C_GELU1*0.044715
LOG2E = math.log2(math.e)
QSCALE = 0.25*LOG2E
NEG = -1.0e30

def lane_vals(p, m, h, li, g):
    p(f"""
    v_and_b32 v{m}, 31, v1
    v_lshrrev_b32 v{h}, 5, v1
    v_and_b32 v{li}, 15, v1
    v_lshrrev_b32 v{g}, 4, v1
    """)

def tr_lanepart(p, dst, m, h, li, g, t0, t1, kmul, stride, cbexpr_reg, swz):
    p(f"""
    v_lshrrev_b32 v{t0}, 2, v{li}
    v_mul_u32_u24 v{t1}, {kmul}, v{h}
    v_add_u32 v{t1}, v{t1}, v{t0}
    v_mul_u32_u24 v{dst}, {stride}, v{t1}
    """)
    if swz == 'w64':
        p(f"""
        v_lshrrev_b32 v{t1}, 3, v{li}
        v_xor_b32 v{t1}, s{cbexpr_reg}, v{t1}
        v_lshl_add_u32 v{dst}, v{t1}, 6, v{dst}
        """)
    elif swz == 'w3':
        p(f"""
        v_xor_b32 v{t1}, s{cbexpr_reg}, v{t0}
        v_lshl_add_u32 v{dst}, v{t1}, 6, v{dst}
        """)
    elif cbexpr_reg is not None:
        p(f"""
        v_mov_b32 v{t1}, s{cbexpr_reg}
        v_lshl_add_u32 v{dst}, v{t1}, 6, v{dst}
        """)
    p(f"""
    v_and_b32 v{t1}, 1, v{g}
    v_lshl_add_u32 v{dst}, v{t1}, 5, v{dst}
    v_and_b32 v{t1}, 3, v{li}
    v_lshl_add_u32 v{dst}, v{t1}, 3, v{dst}
    """)

HS1, HS2, HCS, HONE, HEP = 23, 24, 25, 26, 27
HB1R, HA1R, HB3R = 20, 21, 22
HB1C, HA1C, HB3C = 28, 29, 30
HROW = 31
HT = 48

def rowstat_reads(p, addr_list):
    n = len(addr_list)
    for i, (va, off) in enumerate(addr_list):
        p(f'ds_read_b128 v[{HT+4*i}:{HT+4*i+3}], v{va} offset:{off}')
    for i in range(n):
        p(f's_waitcnt lgkmcnt({n-1-i})')
        for q in range(4):
            r = HT+4*i+q
            p(f'v_dot2c_f32_bf16 v{HS1}, v{r}, v{HONE}')
            p(f'v_dot2c_f32_bf16 v{HS2}, v{r}, v{r}')

def colsum_reads(p, va, offs):
    n = len(offs)
    b = HT + 40
    for i, off in enumerate(offs):
        p(f'ds_read_b64_tr_b16 v[{b+2*i}:{b+2*i+1}], v{va} offset:{off}')
    for i in range(n):
        p(f's_waitcnt lgkmcnt({n-1-i})')
        p(f'v_dot2c_f32_bf16 v{HCS}, v{b+2*i}, v{HONE}')
        p(f'v_dot2c_f32_bf16 v{HCS}, v{b+2*i+1}, v{HONE}')

def halfsum(p, r, t):
    p(f"""
    v_mov_b32 v{t}, v{r}
    s_nop 1
    v_permlane32_swap_b32 v{r}, v{t}
    v_add_f32 v{r}, v{r}, v{t}
    """)

def rowstat_final(p, vrowaddr, second):
    t = HT
    halfsum(p, HS1, t); halfsum(p, HS2, t+1)
    p(f"""
    v_mul_f32 v{HS1}, {hexf(1/512)}, v{HS1}
    v_mul_f32 v{HS2}, {hexf(1/512)}, v{HS2}
    v_fma_f32 v{t}, -v{HS1}, v{HS1}, v{HS2}
    v_max_f32 v{t}, 0, v{t}
    v_add_f32 v{t+1}, {hexf(1e-5)}, v{t}
    v_rsq_f32 v{t+2}, v{t+1}
    s_nop 0
    v_mul_f32 v{t+3}, v{HS1}, v{t+2}
    ds_write_b32 v{vrowaddr}, v{t+2} offset:0
    ds_write_b32 v{vrowaddr}, v{t+3} offset:512
    """)
    if second:
        p(f"""
        v_mul_f32 v{t+4}, v{t+2}, v{t+2}
        v_mul_f32 v{t+4}, v{t+4}, v{t}
        v_add_f32 v{t+4}, {hexf(1e-5)}, v{t+4}
        v_rsq_f32 v{t+5}, v{t+4}
        s_nop 0
        v_mul_f32 v{t+5}, v{t+5}, v{t+2}
        v_mul_f32 v{t+6}, v{HS1}, v{t+5}
        ds_write_b32 v{vrowaddr}, v{t+5} offset:1024
        ds_write_b32 v{vrowaddr}, v{t+6} offset:1536
        """)

def colsum_final(p, vaddr):
    halfsum(p, HCS, HT+8)
    p(f'ds_write_b32 v{vaddr}, v{HCS}')

def helper_stats(p, prog, i):
    s = STEPS[i]; task, t = s['task'], s['t']
    sa, sb = slot_addr('A', i), slot_addr('B', i)
    va, vb = HT+60, HT+61
    if task == 'B1':
        if t == 0:
            p(f'v_mov_b32 v{HS1}, 0\nv_mov_b32 v{HS2}, 0\nv_mov_b32 v{HCS}, 0')
        p(f'v_add_u32 v{va}, {sa}, v{HB1R}')
        al = []
        for k in range(8):
            p(f'v_xor_b32 v{HT+62+k}, {k<<4}, v{va}')
            al.append((HT+62+k, 0))
        rowstat_reads(p, al)
        if prog == 'B':
            p(f'v_add_u32 v{vb}, {sb}, v{HB1C}')
            colsum_reads(p, vb, [ks*2048+o for ks in range(8) for o in (0, 512)][:8])
            colsum_reads(p, vb, [ks*2048+o for ks in range(8) for o in (0, 512)][8:])
        if t == 3:
            rowstat_final(p, HROW, True)
            if prog == 'B':
                colsum_final(p, 33)
            p('s_waitcnt lgkmcnt(0)')
    elif task == 'A1':
        if t == 0:
            p(f'v_mov_b32 v{HS1}, 0\nv_mov_b32 v{HS2}, 0\nv_mov_b32 v{HCS}, 0')
        p(f'v_add_u32 v{va}, {sa}, v{HA1R}')
        al = []
        for k in range(4):
            p(f'v_xor_b32 v{HT+62+k}, {k<<4}, v{va}')
            al.append((HT+62+k, 0))
        rowstat_reads(p, al)
        p(f'v_add_u32 v{vb}, {sb}, v{HA1C}')
        colsum_reads(p, vb, [ks*3072+o for ks in range(4) for o in (0, 768)])
        if t == 7:
            rowstat_final(p, 32, False)
            L = newlabel('a1cs')
            p(f's_cmp_eq_u32 s{sHW}, 3\ns_cbranch_scc1 {L}')
            colsum_final(p, 34)
            p(f'{L}:')
            p('s_waitcnt lgkmcnt(0)')
    elif task == 'B3':
        if t == 0:
            p(f'v_mov_b32 v{HS1}, 0\nv_mov_b32 v{HS2}, 0\nv_mov_b32 v{HCS}, 0')
        p(f'v_add_u32 v{va}, {sa}, v{HB3R}')
        rowstat_reads(p, [(va, kb*1024) for kb in range(4)])
        p(f'v_add_u32 v{vb}, {sb}, v{HB3C}')
        colsum_reads(p, vb, [ks*4096+o for ks in range(4) for o in (0, 1024)])
        if t == 7:
            rowstat_final(p, 32, False)
            colsum_final(p, 34)
            p('s_waitcnt lgkmcnt(0)')

def helper_common_setup(p, prog):
    m, h, li, g, t0, t1 = 48, 49, 50, 51, 52, 53
    lane_vals(p, m, h, li, g)
    p(f"""
    s_sub_u32 s{sHW}, s{sW}, 4
    v_mov_b32 v{HONE}, 0x3f803f80
    v_lshlrev_b32 v13, 4, v1
    """)
    if prog == 'A':
        p(f's_lshl_b32 s{sT0}, s{sA}, 5\nv_add_u32 v{t0}, s{sT0}, v{m}')
    else:
        p(f'v_and_b32 v{t0}, 3, v{m}\nv_add_u32 v{t0}, 64, v{t0}')
    p(f"""
    v_lshlrev_b32 v{HROW}, 2, v{t0}
    v_add_u32 v{HROW}, {TBL}, v{HROW}
    v_and_b32 v{t1}, 15, v{t0}
    v_lshlrev_b32 v54, 3, v{h}
    v_xor_b32 v{t1}, v{t1}, v54
    v_lshlrev_b32 v{t1}, 4, v{t1}
    v_lshl_add_u32 v{HB1R}, v{t0}, 8, v{t1}
    """)
    p(f"""
    s_lshl_b32 s{sT0}, s{sHW}, 5
    v_add_u32 v{t0}, s{sT0}, v{m}
    v_lshlrev_b32 v32, 2, v{t0}
    v_add_u32 v32, {TBL}, v32
    v_lshrrev_b32 v{t1}, 1, v{t0}
    v_and_b32 v{t1}, 7, v{t1}
    v_lshlrev_b32 v54, 2, v{h}
    v_xor_b32 v{t1}, v{t1}, v54
    v_lshlrev_b32 v{t1}, 4, v{t1}
    v_lshl_add_u32 v{HA1R}, v{t0}, 7, v{t1}
    s_lshl_b32 s{sT0}, s{sHW}, 12
    v_add_u32 v{HB3R}, s{sT0}, v13
    """)
    tr_lanepart(p, HB1C, m, h, li, g, t0, t1, 8, 128, sA, 'w64')
    p(f's_min_u32 s{sT1}, s{sHW}, 2')
    tr_lanepart(p, HA1C, m, h, li, g, t0, t1, 8, 192, sT1, None)
    tr_lanepart(p, HB3C, m, h, li, g, t0, t1, 8, 256, sHW, 'w3')
    p(f"""
    s_lshl_b32 s{sT0}, s{sA}, 5
    v_add_u32 v33, s{sT0}, v{m}
    v_lshlrev_b32 v33, 2, v33
    v_add_u32 v33, {T_CS}, v33
    s_lshl_b32 s{sT0}, s{sHW}, 5
    v_add_u32 v34, s{sT0}, v{m}
    v_lshlrev_b32 v34, 2, v34
    v_add_u32 v34, {T_CS}, v34
    """)
    p(f"""
    s_or_b32 s{sT0}, s{sQB}, s{sA}
    s_cmp_eq_u32 s{sT0}, 0
    s_cselect_b32 s{sT0}, 0x40000000, 0
    v_add_u32 v14, s{sT0}, v13
    """)
    p(f"""
    v_lshrrev_b32 v{t0}, 2, v{li}
    s_lshl_b32 s{sT0}, s{sQB}, 1
    s_sub_u32 s{sT0}, s{sT0}, 2
    v_add_u32 v{t0}, s{sT0}, v{t0}
    v_max_i32 v{t0}, 0, v{t0}
    s_lshr_b32 s{sT0}, s{sHEAD}, 1
    s_lshl_b32 s{sT0}, s{sT0}, 4
    v_add_u32 v{t0}, s{sT0}, v{t0}
    v_and_b32 v{t1}, 3, v{li}
    v_lshl_add_u32 v{t0}, v{t0}, 2, v{t1}
    v_lshlrev_b32 v16, 2, v{t0}
    v_add_u32 v16, {FQ_OFF}, v16
    """)

def emit_dma(p, vm, ring, idx):
    ch = STEPS[idx][ring]; t = ch.t; sl = slot_addr(ring, idx); tag = (ring, idx)
    x = ' sc1' if ch.dep else ''
    def dma(srd_, v, soff, m0expr, imm=0, extra=''):
        p(m0expr)
        p(f'buffer_load_dwordx4 v{v}, {srd(srd_)}, {soff} offen offset:{imm}{extra} lds')
        vm.add(tag)
    k = ch.kind
    if k == 'x68':
        p(f's_mov_b32 s{sT0}, {t*256}')
        for n in range(9):
            m0 = f's_add_u32 m0, s{sB0}, {sl+n*1024}' if n < 8 else f's_add_u32 m0, s{sB0+1}, {sl+8192}'
            dma(S_X, 2+n, f's{sT0}', m0)
    elif k == 'x128':
        for n in range(8):
            p(f's_add_u32 s{sT0}, s{sB0+2}, {n*8192+t*128}')
            dma(S_X, 11+(n & 1), f's{sT0}', f's_add_u32 m0, s{sB0+1}, {sl+n*1024}')
    elif k == 'blk64':
        sb = {G_OFF: sB0+3, O_OFF: sB0+4, H2_OFF: sB0+5}[ch.kw['base']]
        for u in range(2):
            p(f's_add_u32 s{sT0}, s{sb}, {t*8192+u*4096}')
            p(f's_add_u32 m0, s{sB0+1}, {sl+u*4096}')
            for n in range(4):
                p(f'buffer_load_dwordx4 v13, {srd(S_WS)}, s{sT0} offen offset:{n*1024}{x} lds'); vm.add(tag)
    elif k == 'x1':
        for u in range(2):
            p(f's_add_u32 s{sT0}, s{sB0+6}, {u*32768+t*4096}')
            p(f's_add_u32 m0, s{sB0+1}, {sl+u*4096}')
            for n in range(4):
                p(f'buffer_load_dwordx4 v13, {srd(S_WS)}, s{sT0} offen offset:{n*1024}{x} lds'); vm.add(tag)
    elif k == 'kq':
        for u in range(2):
            p(f's_add_u32 s{sT0}, s{sB0+7}, {u*4096}')
            p(f's_add_u32 m0, s{sB0+1}, {sl+u*4096}')
            for n in range(4):
                p(f'buffer_load_dwordx4 v14, {srd(S_WS)}, s{sT0} offen offset:{n*1024}{x} lds'); vm.add(tag)
        p(f's_lshr_b32 s{sT1}, s{sB0+1}, 1')
        p(f's_add_u32 m0, s{sT1}, {QL}')
        for n in range(4):
            p(f'buffer_load_dwordx4 v13, {srd(S_WS)}, s{sB0+8} offen offset:{n*1024}{x} lds'); vm.add(tag)
    elif k == 'v':
        for u in range(2):
            p(f's_add_u32 s{sT0}, s{sB0+7}, {u*4096}')
            p(f's_add_u32 m0, s{sB0+1}, {sl+u*4096}')
            for n in range(4):
                p(f'buffer_load_dwordx4 v14, {srd(S_WS)}, s{sT0} offen offset:{n*1024}{x} lds'); vm.add(tag)
    elif k == 'w64':
        for n in range(8):
            p(f's_add_u32 s{sT0}, s{sB0+2}, {t*131072+n*8192}')
            dma(ch.kw['srd'], 2, f's{sT0}', f's_add_u32 m0, s{sB0+1}, {sl+n*1024}')
    elif k == 'wqkv':
        for n in range(6):
            p(f's_add_u32 s{sT0}, s{sB0+3}, {t*196608+(n//3)*49152}')
            dma(S_WQKV, 3+(n % 3), f's{sT0}', f's_add_u32 m0, s{sB0+4}, {sl+n*1024}')
    elif k == 'w3':
        for n in range(8):
            p(f's_add_u32 s{sT0}, s{sB0+5}, {t*229376+n*14336}')
            dma(S_W3, 6, f's{sT0}', f's_add_u32 m0, s{sB0+1}, {sl+n*1024}')
    else:
        raise ValueError(k)

def read_epoch_lds(p):
    p(f"""
    v_mov_b32 v{HT}, {T_EP}
    ds_read_b32 v{HEP}, v{HT}
    s_waitcnt lgkmcnt(0)
    v_readfirstlane_b32 s{sEP}, v{HEP}
    """)

def emit_loader(p, prog, nsteps):
    ring = prog; N = NA if prog == 'A' else NB
    issue = schedule(ring, N, len(STEPS))
    vm = VmTrack()
    p(f'L_LOAD{prog}:')
    p(f's_mov_b32 s{sROLE}, {1 if prog == "A" else 2}')
    m, h, li, g, t0, t1 = 48, 49, 50, 51, 52, 53
    if prog == 'A':
        p(f"""
        s_mul_i32 s{sB0}, s{sA}, 9216
        s_lshl_b32 s{sB0+1}, s{sA}, 13
        v_lshrrev_b32 v{g}, 4, v1
        v_and_b32 v{li}, 15, v1
        s_lshl_b32 s{sT0}, s{sR}, 6
        s_sub_u32 s{sT0}, s{sT0}, 2
        s_mul_i32 s{sT1}, s{sA}, 9
        """)
        for n in range(9):
            p(f"""
            s_add_u32 s{sT2}, s{sT1}, {n}
            s_min_u32 s{sT2}, s{sT2}, 16
            s_lshl_b32 s{sT2}, s{sT2}, 2
            v_add_u32 v{t0}, s{sT2}, v{g}
            v_and_b32 v{t1}, 15, v{t0}
            v_xor_b32 v{t1}, v{t1}, v{li}
            v_add_u32 v{t0}, s{sT0}, v{t0}
            v_lshlrev_b32 v{t0}, 10, v{t0}
            v_lshl_add_u32 v{2+n}, v{t1}, 4, v{t0}
            """)
    else:
        p(f"""
        s_lshl_b32 s{sB0+1}, s{sA}, 13
        s_lshl_b32 s{sB0+2}, s{sA}, 16
        v_lshrrev_b32 v{t0}, 3, v1
        v_lshlrev_b32 v2, 10, v{t0}
        v_lshrrev_b32 v{t0}, 4, v1
        v_and_b32 v{t0}, 1, v{t0}
        v_lshlrev_b32 v{t0}, 2, v{t0}
        v_and_b32 v{t1}, 7, v1
        v_xor_b32 v{t0}, v{t0}, v{t1}
        v_lshl_add_u32 v2, v{t0}, 4, v2
        s_lshl_b32 s{sT0}, s{sC}, 7
        v_add_u32 v2, s{sT0}, v2
        """)
    for idx in issue[-1]:
        emit_dma(p, vm, ring, idx)
    if prog == 'A':
        p(f"""
        v_lshrrev_b32 v{t0}, 3, v1
        v_lshlrev_b32 v{t0}, 10, v{t0}
        v_lshrrev_b32 v{g}, 4, v1
        v_and_b32 v{t1}, 7, v1
        v_xor_b32 v54, v{t1}, v{g}
        v_lshl_add_u32 v11, v54, 4, v{t0}
        v_add_u32 v54, 4, v{g}
        v_and_b32 v54, 7, v54
        v_xor_b32 v54, v{t1}, v54
        v_lshl_add_u32 v12, v54, 4, v{t0}
        s_lshl_b32 s{sT0}, s{sRA}, 17
        s_lshl_b32 s{sT1}, s{sA}, 16
        s_add_u32 s{sB0+2}, s{sT0}, s{sT1}
        s_lshl_b32 s{sT0}, s{sR}, 1
        s_add_u32 s{sT0}, s{sT0}, s{sA}
        s_lshl_b32 s{sT1}, s{sT0}, 15
        s_add_u32 s{sB0+3}, s{sT1}, {G_OFF}
        s_add_u32 s{sB0+4}, s{sT1}, {O_OFF}
        s_mul_i32 s{sT1}, s{sT0}, {112*1024}
        s_add_u32 s{sB0+5}, s{sT1}, {H2_OFF}
        s_lshl_b32 s{sT0}, s{sR3}, 1
        s_add_u32 s{sT0}, s{sT0}, s{sA}
        s_lshl_b32 s{sT0}, s{sT0}, 16
        s_add_u32 s{sB0+6}, s{sT0}, {X1_OFF}
        s_lshl_b32 s{sT0}, s{sHEAD}, 3
        s_add_u32 s{sT0}, s{sT0}, s{sQB}
        s_lshl_b32 s{sT0}, s{sT0}, 13
        s_add_u32 s{sT1}, s{sT0}, s{sB0+1}
        s_add_u32 s{sB0+7}, s{sT1}, {K_OFF-8192}
        s_lshr_b32 s{sT1}, s{sB0+1}, 1
        s_add_u32 s{sT1}, s{sT1}, s{sT0}
        s_add_u32 s{sB0+8}, s{sT1}, {Q_OFF}
        """)
        p(f"""
        v_and_b32 v{t0}, 31, v1
        v_lshlrev_b32 v{t0}, 2, v{t0}
        s_lshl_b32 s{sT0}, s{sR}, 7
        s_add_u32 s{sT0}, s{sT0}, {FG_OFF}
        v_add_u32 v15, s{sT0}, v{t0}
        v_lshlrev_b32 v{t0}, 2, v1
        s_lshl_b32 s{sT0}, s{sR3}, 8
        s_add_u32 s{sT0}, s{sT0}, {FX_OFF}
        v_add_u32 v17, s{sT0}, v{t0}
        s_lshl_b32 s{sT0}, s{sR}, 8
        s_add_u32 s{sT0}, s{sT0}, {FO_OFF}
        v_add_u32 v18, s{sT0}, v{t0}
        v_min_u32 v{t0}, 55, v1
        v_lshlrev_b32 v{t0}, 2, v{t0}
        s_lshr_b32 s{sT0}, s{sR}, 1
        s_lshl_b32 s{sT0}, s{sT0}, 8
        s_add_u32 s{sT0}, s{sT0}, {FH_OFF}
        v_add_u32 v19, s{sT0}, v{t0}
        """)
    else:
        for ip in range(3):
            p(f"""
            v_add_u32 v{t0}, {64*ip}, v1
            v_mul_u32_u24 v{t1}, 43691, v{t0}
            v_lshrrev_b32 v{t1}, 19, v{t1}
            v_mul_u32_u24 v54, 12, v{t1}
            v_sub_u32 v54, v{t0}, v54
            v_mul_u32_u24 v{3+ip}, 3072, v{t1}
            v_lshrrev_b32 v55, 2, v54
            v_lshl_add_u32 v{3+ip}, v55, 10, v{3+ip}
            v_and_b32 v55, 3, v54
            v_lshl_add_u32 v{3+ip}, v55, 4, v{3+ip}
            s_lshl_b32 s{sT0}, s{sHP}, 6
            v_add_u32 v{3+ip}, s{sT0}, v{3+ip}
            """)
        p(f"""
        s_mul_i32 s{sB0+3}, s{sA}, 98304
        s_mul_i32 s{sB0+4}, s{sA}, 6144
        s_mul_i32 s{sB0+5}, s{sA}, 114688
        v_lshrrev_b32 v{t0}, 4, v1
        v_mul_u32_u24 v6, 3584, v{t0}
        v_lshlrev_b32 v{t0}, 2, v{t0}
        v_and_b32 v{t1}, 15, v1
        v_xor_b32 v{t0}, v{t0}, v{t1}
        v_lshl_add_u32 v6, v{t0}, 4, v6
        s_lshl_b32 s{sT0}, s{sC3}, 8
        s_lshl_b32 s{sT1}, s{sIDLE}, 30
        s_add_u32 s{sT0}, s{sT0}, s{sT1}
        v_add_u32 v6, s{sT0}, v6
        s_lshl_b32 s{sT0}, s{sHEAD}, 3
        s_add_u32 s{sT0}, s{sT0}, s{sQB}
        s_lshl_b32 s{sT0}, s{sT0}, 13
        s_add_u32 s{sT1}, s{sT0}, s{sB0+1}
        s_add_u32 s{sB0+7}, s{sT1}, {V_OFF-8192}
        """)
    helper_common_setup(p, prog)
    vm.emit_wait(p, (ring, 0))
    p('s_barrier')
    polled = set()
    FLAGV = dict(FG=15, FQ=16, FX=17, FO=18, FH=19)
    def do_issue(i):
        for idx in issue[i]:
            ch = STEPS[idx][ring]
            if ch.dep and ch.dep not in polled:
                emit_poll(p, vm, ch.dep, HT, FLAGV[ch.dep]); polled.add(ch.dep)
            emit_dma(p, vm, ring, idx)
    i = 0
    b3_first, b3_last = IDX['B3'], IDX['A3']-1
    while i < nsteps:
        s = STEPS[i]
        if i == 6: read_epoch_lds(p)
        if s['task'] == 'A2':
            if prog == 'B': do_issue(i)
            p(f's_branch L_ATT')
            p(f'L_ATT_RET_{prog}:')
            vm.add('ostore')
            if nsteps > b3_first:
                Lidle = f'L_IDLE_{prog}'
                p(f's_cmp_eq_u32 s{sIDLE}, 1\ns_cbranch_scc1 {Lidle}')
            if prog == 'A': do_issue(i)
            if i+1 < len(STEPS): vm.emit_wait(p, (ring, i+1))
            if prog == 'A':
                vm.emit_wait(p, 'ostore'); signal_fo(p)
            p('s_barrier')
            i += 1
            continue
        do_issue(i)
        helper_stats(p, prog, i)
        if prog == 'B' and i == b3_first:
            vm.emit_wait(p, 'ostore'); signal_fo(p)
        if i+1 < len(STEPS): vm.emit_wait(p, (ring, i+1))
        if i == b3_last:
            state_at_a3 = list(vm.ops)
        p('s_barrier')
        if i == b3_last:
            p(f'L_A3_ENTRY_{prog}:')
        i += 1
    p('s_branch L_END')
    if nsteps > b3_last:
        p(f'L_IDLE_{prog}:')
        p('s_waitcnt vmcnt(0)')
        signal_fo(p)
        p('s_barrier')
        vm2 = VmTrack()
        pol2 = set()
        todo = [idx for t in range(-1, b3_last+1) for idx in issue[t] if idx > b3_last]
        for idx in todo:
            ch = STEPS[idx][ring]
            if ch.dep and ch.dep not in pol2:
                emit_poll(p, vm2, ch.dep, HT, FLAGV[ch.dep]); pol2.add(ch.dep)
            emit_dma(p, vm2, ring, idx)
        vm2.emit_wait(p, (ring, b3_last+1))
        assert vm2.ops == state_at_a3, (vm2.ops, state_at_a3)
        p('s_barrier')
        p(f's_branch L_A3_ENTRY_{prog}')
    elif nsteps > b3_first:
        p(f'L_IDLE_{prog}:')
        p('s_waitcnt vmcnt(0)')
        signal_fo(p)
        p('s_branch L_END')

def signal_fo(p):
    emit_signal(p, f"""
    s_lshl_b32 s{sT4}, s{sQB}, 3
    s_add_u32 s{sT4}, s{sT4}, s{sW}
    s_lshl_b32 s{sT4}, s{sT4}, 5
    s_add_u32 s{sT4}, s{sT4}, s{sHEAD}
    s_lshl_b32 s{sT4}, s{sT4}, 2
    s_add_u32 s{sT4}, s{sT4}, {FO_OFF}
    """, HEP)

AQ, AK, AV, AS, ANM, ABD, ABO, AP, AO, AT = 48, 52, 88, 104, 136, 152, 168, 184, 192, 208
AE = 224
def emit_attention(p):
    i = IDX['A2']
    sa, sb = slot_addr('A', i), slot_addr('B', i)
    t = AT
    p('L_ATT:')
    p(f"""
    v_lshlrev_b32 v{t}, 4, v1
    s_lshl_b32 s{sT0}, s{sW}, 10
    v_add_u32 v{t+1}, s{sT0}, v{t}
    v_add_u32 v{t+2}, {QL}, v{t+1}
    v_add_u32 v{t+1}, {sa}, v{t+1}
    ds_read_b128 v[{AQ}:{AQ+3}], v{t+2}
    """)
    for n in range(9):
        p(f'ds_read_b128 v[{AK+4*n}:{AK+4*n+3}], v{t+1} offset:{n*1024}')
    p(f"""
    v_and_b32 v{t+3}, 15, v1
    v_lshrrev_b32 v{t+4}, 5, v1
    v_lshl_add_u32 v{t+3}, v{t+4}, 4, v{t+3}
    v_lshlrev_b32 v{t+3}, 4, v{t+3}
    v_add_u32 v{t+3}, s{sT0}, v{t+3}
    v_add_u32 v{t+3}, {sb}, v{t+3}
    s_sub_u32 s{sNMIN}, 8, s{sW}
    s_cmp_eq_u32 s{sQB}, 0
    s_cselect_b32 s{sNMIN}, s{sNMIN}, 0
    v_and_b32 v{t+5}, 31, v1
    v_lshlrev_b32 v{t+4}, 2, v{t+4}
    v_sub_u32 v{t+5}, v{t+5}, v{t+4}
    v_mov_b32 v{t+6}, {hexf(NEG)}
    v_mov_b32 v{t+7}, 0
    """)
    for r in range(16):
        p(f'v_mov_b32 v{AV+r}, 0x3f803f80')
    for b in range(2):
        for q in range(8):
            rr = b*8+q
            p(f'v_cmp_le_i32 s[{sP0+2*q}:{sP0+2*q+1}], {(rr & 3)+8*(rr >> 2)}, v{t+5}')
        for q in range(8):
            rr = b*8+q
            p(f'v_cndmask_b32 v{ABD+rr}, v{t+6}, v{t+7}, s[{sP0+2*q}:{sP0+2*q+1}]')
            p(f'v_cndmask_b32 v{ABO+rr}, v{t+7}, v{t+6}, s[{sP0+2*q}:{sP0+2*q+1}]')
    def init_S():
        L = newlabel('inits')
        p(f's_cmp_eq_u32 s{sNMIN}, 0\ns_cbranch_scc1 {L}')
        for r in range(32):
            p(f'v_mov_b32 v{AS+r}, v{t+6}')
        p(f'{L}:')
    def qk(n, C):
        S = AS + 16*(n & 1)
        L = newlabel('qk')
        p(f's_cmp_gt_u32 s{sNMIN}, {n}\ns_cbranch_scc1 {L}')
        p(f'v_mfma_f32_32x32x16_bf16 v[{S}:{S+15}], v[{AK+4*n}:{AK+4*n+3}], v[{AQ}:{AQ+3}], {C}')
        p(f'{L}:')
    def blk(b): return f'v[{b}:{b+15}]'
    init_S()
    M = t+8
    p(f'v_mov_b32 v{M}, v{t+6}')
    p('s_waitcnt lgkmcnt(0)')
    def c1(n): return blk(ABO) if n == 0 else (blk(ABD) if n == 8 else '0')
    def maxtile(n):
        S = AS + 16*(n & 1)
        for q in range(8):
            p(f'v_max3_f32 v{M}, v{M}, v{S+2*q}, v{S+2*q+1}')
    qk(0, c1(0))
    for n in range(1, 9):
        qk(n, c1(n))
        if n == 1: p('s_nop 7\ns_nop 3')
        else: p('s_nop 1')
        maxtile(n-1)
    p('s_nop 7\ns_nop 3')
    maxtile(8)
    p(f"""
    v_mov_b32 v{t+9}, v{M}
    s_nop 1
    v_permlane32_swap_b32 v{M}, v{t+9}
    v_max_f32 v{M}, v{M}, v{t+9}
    v_sub_f32 v{M}, 0, v{M}
    """)
    L = newlabel('fx')
    p(f's_cmp_lg_u32 s{sROLE}, 0\ns_cbranch_scc1 {L}')
    p('s_waitcnt vmcnt(0)')
    emit_signal(p, f"""
    s_lshl_b32 s{sT4}, s{sR}, 3
    s_add_u32 s{sT4}, s{sT4}, s{sC}
    s_lshl_b32 s{sT4}, s{sT4}, 2
    s_add_u32 s{sT4}, s{sT4}, s{sW}
    s_lshl_b32 s{sT4}, s{sT4}, 2
    s_add_u32 s{sT4}, s{sT4}, {FX_OFF}
    """, CEP)
    p(f'{L}:')
    for r in range(16):
        p(f'v_mov_b32 v{ANM+r}, v{M}')
    for r in range(0, 16, 2):
        p(f'v_pk_add_f32 v[{ABD+r}:{ABD+r+1}], v[{ABD+r}:{ABD+r+1}], v[{ANM}:{ANM+1}]')
        p(f'v_pk_add_f32 v[{ABO+r}:{ABO+r+1}], v[{ABO+r}:{ABO+r+1}], v[{ANM}:{ANM+1}]')
    init_S()
    def c2(n): return blk(ABO) if n == 0 else (blk(ABD) if n == 8 else blk(ANM))
    def vread(n):
        b = AV + 8*(n & 1)
        p('s_mov_b32 exec_lo, 0xffff\ns_mov_b32 exec_hi, 0xffff')
        p(f'ds_read_b128 v[{b}:{b+3}], v{t+3} offset:{n*1024}')
        p(f'ds_read_b128 v[{b+4}:{b+7}], v{t+3} offset:{n*1024+512}')
        p('s_mov_b64 exec, -1')
    def soft(n):
        S = AS + 16*(n & 1)
        for r in range(16):
            p(f'v_exp_f32 v{AE+r}, v{S+r}')
        for q in range(8):
            p(f'v_cvt_pk_bf16_f32 v{AP+q}, v{AE+2*q}, v{AE+2*q+1}')
    def pv(n):
        b = AV + 8*(n & 1)
        C = '0' if n == 0 else blk(AO)
        p('s_waitcnt lgkmcnt(0)')
        p(f'v_mfma_f32_32x32x16_bf16 {blk(AO)}, v[{b}:{b+3}], v[{AP}:{AP+3}], {C}')
        p(f'v_mfma_f32_32x32x16_bf16 {blk(AO)}, v[{b+4}:{b+7}], v[{AP+4}:{AP+7}], {blk(AO)}')
    qk(0, c2(0))
    for n in range(9):
        vread(n)
        if n < 8: qk(n+1, c2(n+1))
        if n == 0: p('s_nop 7\ns_nop 3')
        soft(n)
        pv(n)
    p('s_nop 7\ns_nop 7')
    p(f'v_rcp_f32 v{t+9}, v{AO+8}')
    p('s_nop 0')
    for r in range(0, 8, 2):
        p(f'v_pk_mul_f32 v[{AO+r}:{AO+r+1}], v[{AO+r}:{AO+r+1}], v[{t+8}:{t+9}] op_sel:[0,1] op_sel_hi:[1,1]')
    for q in range(4):
        p(f'v_cvt_pk_bf16_f32 v{AP+q}, v{AO+2*q}, v{AO+2*q+1}')
    p(f"""
    s_lshl_b32 s{sT0}, s{sQB}, 3
    s_add_u32 s{sT0}, s{sT0}, s{sW}
    s_lshl_b32 s{sT0}, s{sT0}, 5
    s_add_u32 s{sT0}, s{sT0}, s{sHEAD}
    s_lshl_b32 s{sT0}, s{sT0}, 10
    s_add_u32 s{sT0}, s{sT0}, {O_OFF}
    buffer_store_dwordx4 v[{AP}:{AP+3}], v{t}, {srd(S_WS)}, s{sT0} offen{sc()}
    s_cmp_eq_u32 s{sROLE}, 0
    s_cbranch_scc1 L_ATT_RET_C
    s_cmp_eq_u32 s{sROLE}, 1
    s_cbranch_scc1 L_ATT_RET_A
    s_branch L_ATT_RET_B
    """)
CEP = 13

VA_B1, VW64N, VW64P, VABLK, VA_A1, VWQ, VAB3, VW3A, VW3B, VXCAP, VL16 = range(2, 13)
VRS, VMR = 14, 15
VX, VX1, ACCS, ACC, FR, TMP = 16, 24, 32, 48, 112, 176
sRW, sCW = 68, 69
sK2 = 96
sLG = 98
def blk(b): return f'v[{b}:{b+15}]'
def q4(b): return f'v[{b}:{b+3}]'
def pr(b): return f'v[{b}:{b+1}]'

def compute_setup(p):
    m, h, li, g, t0, t1 = 48, 49, 50, 51, 52, 53
    p('L_COMPUTE:')
    p(f's_mov_b32 s{sROLE}, 0')
    L = newlabel('ep')
    p(f"""
    s_or_b32 s{sT0}, s2, s{sW}
    s_cmp_lg_u32 s{sT0}, 0
    s_cbranch_scc1 {L}
    s_mov_b32 s{sT0}, {EP_OFF}
    buffer_load_dword v{t0}, off, {srd(S_WS)}, s{sT0} sc1
    s_waitcnt vmcnt(0)
    v_xor_b32 v{t0}, 0x9e3779b9, v{t0}
    s_mov_b32 s{sT1}, 0x85ebca6b
    v_mul_lo_u32 v{t0}, v{t0}, s{sT1}
    v_add_u32 v{t0}, 0x01234567, v{t0}
    v_max_u32 v{t0}, 1, v{t0}
    s_mov_b64 exec, 1
    buffer_store_dword v{t0}, off, {srd(S_WS)}, s{sT0} sc1
    buffer_store_dword v{t0}, off, {srd(S_DBG)}, 0 sc1
    s_mov_b64 exec, -1
    {L}:
    """)
    lane_vals(p, m, h, li, g)
    p(f"""
    s_lshr_b32 s{sRW}, s{sW}, 1
    s_and_b32 s{sCW}, s{sW}, 1
    v_lshlrev_b32 v{VL16}, 4, v1
    """)
    p(f"""
    s_lshl_b32 s{sT0}, s{sRW}, 5
    s_add_u32 s{sT0}, s{sT0}, 2
    s_sub_u32 s{sT1}, s{sT0}, s{sSH}
    v_add_u32 v{t0}, s{sT1}, v{m}
    v_and_b32 v{t1}, 15, v{t0}
    v_xor_b32 v{t1}, v{t1}, v{h}
    v_lshlrev_b32 v{t1}, 4, v{t1}
    v_lshl_add_u32 v{VA_B1}, v{t0}, 8, v{t1}
    """)
    p(f"""
    v_add_u32 v{t0}, s{sT0}, v{m}
    s_and_b32 s{sT1}, s{sC}, 1
    s_lshl_b32 s{sT1}, s{sT1}, 3
    s_lshl_b32 s{sT2}, s{sCW}, 2
    s_add_u32 s{sT1}, s{sT1}, s{sT2}
    v_and_b32 v{t1}, 15, v{t0}
    v_xor_b32 v{t1}, s{sT1}, v{t1}
    v_lshlrev_b32 v{t1}, 4, v{t1}
    v_lshl_add_u32 v{VXCAP}, v{t0}, 8, v{t1}
    v_lshl_add_u32 v{VXCAP}, v{h}, 3, v{VXCAP}
    """)
    tr_lanepart(p, VW64N, m, h, li, g, t0, t1, 8, 128, sCW, 'w64')
    tr_lanepart(p, VW64P, m, h, li, g, t0, t1, 4, 128, sCW, 'w64')
    p(f"""
    s_lshl_b32 s{sT0}, s{sRW}, 13
    v_add_u32 v{VABLK}, s{sT0}, v{VL16}
    v_add_u32 v{VAB3}, s{sT0}, v{VL16}
    """)
    p(f"""
    s_lshl_b32 s{sT0}, s{sW}, 5
    v_add_u32 v{t0}, s{sT0}, v{m}
    v_lshrrev_b32 v{t1}, 1, v{t0}
    v_and_b32 v{t1}, 7, v{t1}
    v_xor_b32 v{t1}, v{t1}, v{h}
    v_lshlrev_b32 v{t1}, 4, v{t1}
    v_lshl_add_u32 v{VA_A1}, v{t0}, 7, v{t1}
    """)
    tr_lanepart(p, VWQ, m, h, li, g, t0, t1, 8, 192, None, None)
    p(f's_lshl_b32 s{sT1}, s{sCW}, 1')
    tr_lanepart(p, VW3A, m, h, li, g, t0, t1, 4, 256, sT1, 'w3')
    p(f"""
    v_xor_b32 v{VW3B}, 64, v{VW3A}
    s_mov_b32 s{sK2}, {hexf(C_GELU2)}
    s_mov_b32 s{sK2+1}, {hexf(C_GELU2)}
    s_mov_b32 s{sLG}, {hexf(-LOG2E)}
    s_mov_b32 s{sLG+1}, {hexf(-LOG2E)}
    """)

def step64(p, i, natural, acc, first):
    sa, sb = slot_addr('A', i), slot_addr('B', i)
    va, vw = TMP, TMP+1
    if natural:
        p(f'v_add_u32 v{va}, {sa}, v{VA_B1}')
        for ks in range(8):
            p(f'v_xor_b32 v{TMP+2+ks}, {ks<<5}, v{va}')
        p(f'v_add_u32 v{vw}, {sb}, v{VW64N}')
    else:
        p(f'v_add_u32 v{va}, {sa}, v{VABLK}')
        p(f'v_add_u32 v{vw}, {sb}, v{VW64P}')
    d2 = 512 if natural else 1024
    def rd(ks):
        f = FR + 8*(ks & 3)
        if natural: p(f'ds_read_b128 {q4(f)}, v{TMP+2+ks}')
        else: p(f'ds_read_b128 {q4(f)}, v{va} offset:{ks*1024}')
        p(f'ds_read_b64_tr_b16 {pr(f+4)}, v{vw} offset:{ks*2048}')
        p(f'ds_read_b64_tr_b16 {pr(f+6)}, v{vw} offset:{ks*2048+d2}')
    def mm(ks):
        f = FR + 8*(ks & 3)
        C = '0' if (first and ks == 0) else blk(acc)
        p(f'v_mfma_f32_32x32x16_bf16 {blk(acc)}, {q4(f+4)}, {q4(f)}, {C}')
    for ks in range(4): rd(ks)
    for ks in range(8):
        outstanding = min(8, ks+4) - ks
        p(f's_waitcnt lgkmcnt({3*(outstanding-1)})')
        mm(ks)
        if ks+4 < 8: rd(ks+4)

def xcapture(p, i):
    L = newlabel('xcap')
    t = STEPS[i]['t']
    p(f's_lshr_b32 s{sT0}, s{sC}, 1\ns_cmp_lg_u32 s{sT0}, {t}\ns_cbranch_scc1 {L}')
    p(f'v_add_u32 v{TMP}, {slot_addr("A", i)}, v{VXCAP}')
    for sg in range(2):
        for q in range(2):
            p(f'v_xor_b32 v{TMP+1}, {(2*sg+q)<<4}, v{TMP}')
            p(f'ds_read_b64 {pr(VX+4*sg+2*q)}, v{TMP+1}')
    p('s_waitcnt lgkmcnt(0)')
    p(f'{L}:')

def gelu_pairs(p, z, n, k1, tmp):
    for i in range(n): p(f'v_pk_mul_f32 {pr(tmp+2*i)}, {pr(z+2*i)}, {pr(z+2*i)}')
    for i in range(n): p(f'v_pk_fma_f32 {pr(tmp+2*i)}, {pr(tmp+2*i)}, s[{sK2}:{sK2+1}], {pr(k1)}')
    for i in range(n): p(f'v_pk_mul_f32 {pr(tmp+2*i)}, {pr(tmp+2*i)}, {pr(z+2*i)}')
    for i in range(2*n): p(f'v_exp_f32 v{tmp+i}, v{tmp+i}')
    for i in range(n): p(f'v_pk_add_f32 {pr(tmp+2*i)}, {pr(tmp+2*i)}, 1.0 op_sel_hi:[1,0]')
    for i in range(2*n): p(f'v_rcp_f32 v{tmp+i}, v{tmp+i}')
    for i in range(n): p(f'v_pk_mul_f32 {pr(z+2*i)}, {pr(z+2*i)}, {pr(tmp+2*i)}')

def ln_fold_T(p, acc, cs, st):
    for i in range(8):
        p(f'v_pk_mul_f32 {pr(cs+2*i)}, {pr(cs+2*i)}, {pr(st)} op_sel:[0,1] op_sel_hi:[1,1]')
    for i in range(8):
        p(f'v_pk_fma_f32 {pr(acc+2*i)}, {pr(acc+2*i)}, {pr(st)}, {pr(cs+2*i)} op_sel_hi:[1,0,1] neg_lo:[0,0,1] neg_hi:[0,0,1]')

def pack(p, dst, src, n):
    for i in range(n): p(f'v_cvt_pk_bf16_f32 v{dst+i}, v{src+2*i}, v{src+2*i+1}')

def ws_store(p, data, soff, imm=0):
    p(f'buffer_store_dwordx4 {q4(data)}, v{VL16}, {srd(S_WS)}, s{soff} offen offset:{imm}{sc()}')

def signal_compute(p, base, e0, e1sh, e1):
    p('s_waitcnt vmcnt(0)')
    emit_signal(p, f"""
    s_lshl_b32 s{sT4}, s{e0}, {e1sh}
    s_add_u32 s{sT4}, s{sT4}, s{e1}
    s_lshl_b32 s{sT4}, s{sT4}, 2
    s_add_u32 s{sT4}, s{sT4}, s{sW}
    s_lshl_b32 s{sT4}, s{sT4}, 2
    s_add_u32 s{sT4}, s{sT4}, {base}
    """, CEP)

def epi_b1(p):
    m, h = TMP+40, TMP+41
    cs, st, tv, k1 = TMP, TMP+16, TMP+18, TMP+20
    g = TMP+24
    p(f"""
    v_and_b32 v{m}, 31, v1
    v_lshrrev_b32 v{h}, 5, v1
    s_lshl_b32 s{sT0}, s{sRW}, 5
    s_add_u32 s{sT0}, s{sT0}, 2
    v_add_u32 v{tv}, s{sT0}, v{m}
    v_lshlrev_b32 v{tv}, 2, v{tv}
    v_add_u32 v{tv}, {TBL}, v{tv}
    s_lshl_b32 s{sT1}, s{sSH}, 2
    v_subrev_u32 v{tv+1}, s{sT1}, v{tv}
    ds_read_b32 v{VRS}, v{tv} offset:0
    ds_read_b32 v{VMR}, v{tv} offset:512
    ds_read_b32 v{st}, v{tv+1} offset:1024
    ds_read_b32 v{st+1}, v{tv+1} offset:1536
    s_lshl_b32 s{sT1}, s{sCW}, 7
    v_lshlrev_b32 v{tv}, 4, v{h}
    v_add_u32 v{tv}, s{sT1}, v{tv}
    v_add_u32 v{tv}, {T_CS}, v{tv}
    """)
    for q in range(4): p(f'ds_read_b128 {q4(cs+4*q)}, v{tv} offset:{32*q}')
    Lp = newlabel('epoll'); Ld = newlabel('epolld')
    p(f"""
    s_mov_b32 s{sT5}, 0x10000
    {Lp}:
    buffer_load_dword v{CEP}, off, {srd(S_DBG)}, 0 sc1
    s_waitcnt vmcnt(0)
    v_readfirstlane_b32 s{sEP}, v{CEP}
    s_cmp_lg_u32 s{sEP}, 0
    s_cbranch_scc1 {Ld}
    s_sub_u32 s{sT5}, s{sT5}, 1
    s_cmp_eq_u32 s{sT5}, 0
    s_cbranch_scc0 {Lp}
    {Ld}:
    v_mov_b32 v{k1+2}, {T_EP}
    ds_write_b32 v{k1+2}, v{CEP}
    v_mov_b32 v{k1}, {hexf(C_GELU1)}
    v_mov_b32 v{k1+1}, {hexf(C_GELU1)}
    s_waitcnt lgkmcnt(0)
    """)
    ln_fold_T(p, ACC, cs, st)
    gelu_pairs(p, ACC, 8, k1, g)
    pack(p, g, ACC, 8)
    p(f"""
    s_lshl_b32 s{sT0}, s{sR}, 6
    s_lshl_b32 s{sT1}, s{sRW}, 5
    s_add_u32 s{sT0}, s{sT0}, s{sT1}
    s_sub_u32 s{sT0}, s{sT0}, s{sSH}
    v_add_u32 v{m}, s{sT0}, v{m}
    v_cmp_gt_u32 vcc, 2048, v{m}
    """)
    for i in range(8): p(f'v_cndmask_b32 v{g+i}, 0, v{g+i}, vcc')
    p(f"""
    s_lshl_b32 s{sT0}, s{sR}, 1
    s_add_u32 s{sT0}, s{sT0}, s{sRW}
    s_lshl_b32 s{sT0}, s{sT0}, 5
    s_lshl_b32 s{sT1}, s{sC}, 2
    s_add_u32 s{sT0}, s{sT0}, s{sT1}
    s_lshl_b32 s{sT1}, s{sCW}, 1
    s_add_u32 s{sT0}, s{sT0}, s{sT1}
    s_lshl_b32 s{sT0}, s{sT0}, 10
    s_add_u32 s{sT1}, s{sT0}, {G_OFF}
    """)
    ws_store(p, g, sT1, 0); ws_store(p, g+4, sT1, 1024)

def pipe_step(p, i, kind, first, last_of_task):
    sa, sb = slot_addr('A', i), slot_addr('B', i)
    va, vw, vw2 = TMP, TMP+1, TMP+2
    X, Y = FR, FR+16
    if kind == 'A1':
        p(f'v_add_u32 v{va}, {sa}, v{VA_A1}')
        for ks in range(4): p(f'v_xor_b32 v{TMP+4+ks}, {ks<<5}, v{va}')
        p(f'v_add_u32 v{vw}, {sb}, v{VWQ}')
        nrd = 7
        def rd(ks):
            f = X if (ks & 1) == 0 else Y
            p(f'ds_read_b128 {q4(f)}, v{TMP+4+ks}')
            for b in range(3):
                p(f'ds_read_b64_tr_b16 {pr(f+4+4*b)}, v{vw} offset:{ks*3072+b*64}')
                p(f'ds_read_b64_tr_b16 {pr(f+6+4*b)}, v{vw} offset:{ks*3072+b*64+768}')
        def mm(ks, zero):
            f = X if (ks & 1) == 0 else Y
            for b in range(3):
                a = ACC+16*b; C = '0' if zero else blk(a)
                if b < 2: p(f'v_mfma_f32_32x32x16_bf16 {blk(a)}, {q4(f+4+4*b)}, {q4(f)}, {C}')
                else:     p(f'v_mfma_f32_32x32x16_bf16 {blk(a)}, {q4(f)}, {q4(f+4+4*b)}, {C}')
    else:
        p(f'v_add_u32 v{va}, {sa}, v{VAB3}')
        p(f'v_add_u32 v{vw}, {sb}, v{VW3A}')
        p(f'v_add_u32 v{vw2}, {sb}, v{VW3B}')
        nrd = 6
        def rd(ks):
            f = X if (ks & 1) == 0 else Y
            p(f'ds_read_b128 {q4(f)}, v{va} offset:{ks*1024}')
            p(f'ds_read_b128 {q4(f+4)}, v{va} offset:{4096+ks*1024}')
            for cb, v in enumerate((vw, vw2)):
                p(f'ds_read_b64_tr_b16 {pr(f+8+4*cb)}, v{v} offset:{ks*4096}')
                p(f'ds_read_b64_tr_b16 {pr(f+10+4*cb)}, v{v} offset:{ks*4096+2048}')
        def mm(ks, zero):
            f = X if (ks & 1) == 0 else Y
            for rb in range(2):
                for cb in range(2):
                    a = ACC+16*(2*rb+cb); C = '0' if zero else blk(a)
                    p(f'v_mfma_f32_32x32x16_bf16 {blk(a)}, {q4(f+8+4*cb)}, {q4(f+4*rb)}, {C}')
    rd(0)
    if not first: mm(3, False)
    rd(1)
    p(f's_waitcnt lgkmcnt({nrd})'); mm(0, first)
    rd(2)
    p(f's_waitcnt lgkmcnt({nrd})'); mm(1, False)
    rd(3)
    p(f's_waitcnt lgkmcnt({nrd})'); mm(2, False)
    p('s_waitcnt lgkmcnt(0)')
    return mm

def epi_a1(p):
    m, h = TMP+60, TMP+61
    cs, st, tv = TMP, TMP+16, TMP+18
    pk = TMP+24
    p(f"""
    v_and_b32 v{m}, 31, v1
    v_lshrrev_b32 v{h}, 5, v1
    s_lshl_b32 s{sT0}, s{sW}, 5
    v_add_u32 v{tv}, s{sT0}, v{m}
    v_lshlrev_b32 v{tv}, 2, v{tv}
    v_add_u32 v{tv}, {TBL}, v{tv}
    ds_read_b32 v{st}, v{tv} offset:0
    ds_read_b32 v{st+1}, v{tv} offset:512
    v_lshlrev_b32 v{tv+1}, 4, v{h}
    v_add_u32 v{tv+1}, {T_CS}, v{tv+1}
    """)
    p(f"""
    s_lshl_b32 s{sT0}, s{sRA}, 2
    s_add_u32 s{sT0}, s{sT0}, s{sW}
    s_lshl_b32 s{sT1}, s{sHP}, 7
    s_add_u32 s{sT1}, s{sT1}, s{sT0}
    s_lshl_b32 s{sT1}, s{sT1}, 10
    s_add_u32 s{sT2}, s{sT1}, {Q_OFF}
    s_add_u32 s{sT3}, s{sT2}, 65536
    """)
    for b in range(2):
        for q in range(4): p(f'ds_read_b128 {q4(cs+4*q)}, v{tv+1} offset:{b*128+32*q}')
        p('s_waitcnt lgkmcnt(0)')
        if b == 0:
            p(f'v_mul_f32 v{st+4}, {hexf(QSCALE)}, v{st}\nv_mul_f32 v{st+5}, {hexf(QSCALE)}, v{st+1}')
            ln_fold_T(p, ACC, cs, st+4)
        else:
            ln_fold_T(p, ACC+16, cs, st)
        pack(p, pk+8*b, ACC+16*b, 8)
        if b == 1:
            p(f's_add_u32 s{sT2}, s{sT2}, {K_OFF-Q_OFF}\ns_add_u32 s{sT3}, s{sT3}, {K_OFF-Q_OFF}')
        ws_store(p, pk+8*b, sT2); ws_store(p, pk+8*b+4, sT3)
    a = ACC+32
    rs, mr, c1 = TMP, TMP+44, TMP+16
    p(f"""
    s_lshl_b32 s{sT0}, s{sW}, 7
    v_lshlrev_b32 v{tv}, 4, v{h}
    v_add_u32 v{tv}, s{sT0}, v{tv}
    v_add_u32 v{tv}, {TBL}, v{tv}
    v_lshlrev_b32 v{tv+1}, 2, v{m}
    v_add_u32 v{tv+1}, {T_CS+256}, v{tv+1}
    """)
    for q in range(4):
        p(f'ds_read_b128 {q4(rs+4*q)}, v{tv} offset:{32*q}')
        p(f'ds_read_b128 {q4(mr+4*q)}, v{tv} offset:{512+32*q}')
    p(f'ds_read_b32 v{c1}, v{tv+1}')
    p('s_waitcnt lgkmcnt(0)')
    for i in range(8):
        p(f'v_pk_mul_f32 {pr(mr+2*i)}, {pr(mr+2*i)}, {pr(c1)} op_sel_hi:[1,0]')
    for i in range(8):
        p(f'v_pk_fma_f32 {pr(a+2*i)}, {pr(a+2*i)}, {pr(rs+2*i)}, {pr(mr+2*i)} neg_lo:[0,0,1] neg_hi:[0,0,1]')
    pv_ = TMP+24
    pack(p, pv_, a, 8)
    p(f"""
    v_lshrrev_b32 v{tv}, 4, v{m}
    v_lshlrev_b32 v{tv}, 16, v{tv}
    v_and_b32 v{tv+1}, 15, v{m}
    v_lshl_add_u32 v{tv+1}, v{h}, 4, v{tv+1}
    v_lshl_add_u32 v{tv}, v{tv+1}, 4, v{tv}
    s_add_u32 s{sT2}, s{sT1}, {V_OFF}
    buffer_store_dwordx4 {q4(pv_)}, v{tv}, {srd(S_WS)}, s{sT2} offen offset:0{sc()}
    buffer_store_dwordx4 {q4(pv_+4)}, v{tv}, {srd(S_WS)}, s{sT2} offen offset:512{sc()}
    """)

def unpack_bf16(p, dst, src, n):
    for i in range(n):
        p(f'v_lshlrev_b32 v{dst+2*i}, 16, v{src+i}')
        p(f'v_and_b32 v{dst+2*i+1}, 0xffff0000, v{src+i}')

def blk64_soff(p, base, KB):
    p(f"""
    s_lshl_b32 s{sT0}, s{sR}, 1
    s_add_u32 s{sT0}, s{sT0}, s{sRW}
    s_mul_i32 s{sT0}, s{sT0}, {KB}
    s_lshl_b32 s{sT1}, s{sC}, 2
    s_add_u32 s{sT0}, s{sT0}, s{sT1}
    s_lshl_b32 s{sT1}, s{sCW}, 1
    s_add_u32 s{sT0}, s{sT0}, s{sT1}
    s_lshl_b32 s{sT0}, s{sT0}, 10
    s_add_u32 s{sT1}, s{sT0}, {base}
    """)

def epi_b2(p):
    x = TMP
    unpack_bf16(p, x, VX, 8)
    for i in range(8):
        p(f'v_pk_fma_f32 {pr(x+2*i)}, {pr(x+2*i)}, {pr(VRS)}, {pr(VRS)} op_sel:[0,0,1] op_sel_hi:[1,0,1] neg_lo:[0,0,1] neg_hi:[0,0,1]')
    for i in range(8):
        p(f'v_pk_add_f32 {pr(x+2*i)}, {pr(x+2*i)}, {pr(ACC+2*i)}')
    pack(p, VX1, x, 8)
    blk64_soff(p, X1_OFF, 32)
    ws_store(p, VX1, sT1, 0); ws_store(p, VX1+4, sT1, 1024)

def epi_b3(p):
    m, h = TMP+60, TMP+61
    cs, st, tv, k1, g = TMP, TMP+16, TMP+18, TMP+20, TMP+24
    p(f"""
    v_and_b32 v{m}, 31, v1
    v_lshrrev_b32 v{h}, 5, v1
    s_lshl_b32 s{sT0}, s{sRW}, 6
    v_add_u32 v{tv}, s{sT0}, v{m}
    v_lshlrev_b32 v{tv}, 2, v{tv}
    v_add_u32 v{tv}, {TBL}, v{tv}
    s_lshl_b32 s{sT1}, s{sCW}, 8
    v_lshlrev_b32 v{tv+1}, 4, v{h}
    v_add_u32 v{tv+1}, s{sT1}, v{tv+1}
    v_add_u32 v{tv+1}, {T_CS}, v{tv+1}
    v_mov_b32 v{k1}, {hexf(C_GELU1)}
    v_mov_b32 v{k1+1}, {hexf(C_GELU1)}
    s_lshl_b32 s{sT0}, s{sR3}, 2
    s_lshl_b32 s{sT1}, s{sRW}, 1
    s_add_u32 s{sT0}, s{sT0}, s{sT1}
    s_mul_i32 s{sT0}, s{sT0}, 112
    s_lshl_b32 s{sT1}, s{sC3}, 3
    s_add_u32 s{sT0}, s{sT0}, s{sT1}
    s_lshl_b32 s{sT1}, s{sCW}, 2
    s_add_u32 s{sT0}, s{sT0}, s{sT1}
    s_lshl_b32 s{sT0}, s{sT0}, 10
    s_add_u32 s{sT2}, s{sT0}, {H2_OFF}
    """)
    for rb in range(2):
        for cb in range(2):
            a = ACC+16*(2*rb+cb)
            p(f'ds_read_b32 v{st}, v{tv} offset:{rb*128}')
            p(f'ds_read_b32 v{st+1}, v{tv} offset:{512+rb*128}')
            for q in range(4): p(f'ds_read_b128 {q4(cs+4*q)}, v{tv+1} offset:{cb*128+32*q}')
            p('s_waitcnt lgkmcnt(0)')
            ln_fold_T(p, a, cs, st)
            gelu_pairs(p, a, 8, k1, g)
            pk = g+16+8*((2*rb+cb) & 1)
            pack(p, pk, a, 8)
            p(f's_add_u32 s{sT3}, s{sT2}, {(rb*112+2*cb)*1024}')
            ws_store(p, pk, sT3, 0); ws_store(p, pk+4, sT3, 1024)

def epi_final(p):
    x1, x, t = TMP, TMP+16, TMP+32
    y = ACC
    unpack_bf16(p, x1, VX1, 8)
    for i in range(8): p(f'v_pk_add_f32 {pr(y+2*i)}, {pr(y+2*i)}, {pr(x1+2*i)}')
    for i in range(8): p(f'v_pk_mul_f32 {pr(t+2*i)}, {pr(y+2*i)}, s[{sLG}:{sLG+1}]')
    for i in range(16): p(f'v_exp_f32 v{t+i}, v{t+i}')
    for i in range(8): p(f'v_pk_add_f32 {pr(t+2*i)}, {pr(t+2*i)}, 1.0 op_sel_hi:[1,0]')
    for i in range(16): p(f'v_rcp_f32 v{t+i}, v{t+i}')
    unpack_bf16(p, x, VX, 8)
    for i in range(8): p(f'v_pk_mul_f32 {pr(y+2*i)}, {pr(y+2*i)}, {pr(t+2*i)}')
    for i in range(8): p(f'v_pk_fma_f32 {pr(y+2*i)}, {pr(y+2*i)}, {pr(ACCS+2*i)}, {pr(x+2*i)}')
    pack(p, t, y, 8)
    p('s_nop 1')
    for sg in range(2):
        b = t+4*sg
        p(f'v_permlane32_swap_b32 v{b}, v{b+2}')
        p(f'v_permlane32_swap_b32 v{b+1}, v{b+3}')
    m, h = TMP+60, TMP+61
    p(f"""
    v_and_b32 v{m}, 31, v1
    v_lshrrev_b32 v{h}, 5, v1
    v_lshlrev_b32 v{m}, 10, v{m}
    v_lshl_add_u32 v{m}, v{h}, 4, v{m}
    s_lshl_b32 s{sT0}, s{sR}, 16
    s_lshl_b32 s{sT1}, s{sRW}, 15
    s_add_u32 s{sT0}, s{sT0}, s{sT1}
    s_lshl_b32 s{sT1}, s{sC}, 7
    s_add_u32 s{sT0}, s{sT0}, s{sT1}
    s_lshl_b32 s{sT1}, s{sCW}, 6
    s_add_u32 s{sT0}, s{sT0}, s{sT1}
    buffer_store_dwordx4 {q4(t)}, v{m}, {srd(S_OUT)}, s{sT0} offen offset:0
    buffer_store_dwordx4 {q4(t+4)}, v{m}, {srd(S_OUT)}, s{sT0} offen offset:32
    """)

def emit_compute(p, nsteps):
    compute_setup(p)
    p('s_barrier')
    pend = None
    i = 0
    b3_first, b3_last = IDX['B3'], IDX['A3']-1
    def sig(name):
        if name == 'FG': signal_compute(p, FG_OFF, sR, 3, sC)
        if name == 'FQ': signal_compute(p, FQ_OFF, sHP, 4, sRA)
        if name == 'FH': signal_compute(p, FH_OFF, sR3, 4, sC3)
        if name == 'FO':
            p('s_waitcnt vmcnt(0)')
            emit_signal(p, f"""
            s_lshl_b32 s{sT4}, s{sQB}, 3
            s_add_u32 s{sT4}, s{sT4}, s{sW}
            s_lshl_b32 s{sT4}, s{sT4}, 5
            s_add_u32 s{sT4}, s{sT4}, s{sHEAD}
            s_lshl_b32 s{sT4}, s{sT4}, 2
            s_add_u32 s{sT4}, s{sT4}, {FO_OFF}
            """, CEP)
    while i < nsteps:
        s = STEPS[i]; task, t = s['task'], s['t']
        if t == 0 and i > 0:
            prev = STEPS[i-1]['task']
            if pend: pend(3, False); pend = None
            if prev == 'B1': epi_b1(p)
            if prev == 'A1': epi_a1(p)
            if prev == 'B2': epi_b2(p)
            if prev == 'B3':
                epi_b3(p)
                p('L_A3_ENTRY_C:')
        for name, st_ in SIGNAL_STEP.items():
            if st_ == i and name != 'FX':
                if name == 'FH':
                    L = newlabel('fh'); p(f's_cmp_eq_u32 s{sIDLE}, 1\ns_cbranch_scc1 {L}'); sig(name); p(f'{L}:')
                else: sig(name)
        if task == 'B1':
            xcapture(p, i); step64(p, i, True, ACC, t == 0)
        elif task in ('B2', 'B4'):
            step64(p, i, False, ACC, t == 0)
        elif task == 'A3':
            step64(p, i, False, ACCS, t == 0)
        elif task in ('A1', 'B3'):
            pend = pipe_step(p, i, task, t == 0, False)
        elif task == 'A2':
            p('s_branch L_ATT\nL_ATT_RET_C:')
            if nsteps > b3_first:
                p(f's_cmp_eq_u32 s{sIDLE}, 1\ns_cbranch_scc1 L_IDLE_C')
        p('s_barrier')
        i += 1
    last = STEPS[nsteps-1]['task']
    if pend: pend(3, False)
    if nsteps == len(STEPS): epi_final(p)
    else:
        {'B1': epi_b1, 'A1': epi_a1, 'B2': epi_b2, 'B3': epi_b3}.get(last, lambda p: None)(p)
        if last == 'B3': p('L_A3_ENTRY_C:')
    p('s_branch L_END')
    if nsteps > b3_first:
        p('L_IDLE_C:')
        sig('FO')
        p('s_barrier')
        if nsteps > b3_last:
            p('s_barrier')
            p('s_branch L_A3_ENTRY_C')
        else:
            p('s_branch L_END')

def generate(stop_task=None):
    nsteps = len(STEPS)
    if stop_task:
        nxt = {'B1': 'A1', 'A1': 'B2', 'B2': 'A2', 'A2': 'B3', 'B3': 'A3', 'A3': 'B4'}[stop_task]
        nsteps = IDX[nxt]
    p = Prog()
    emit_prologue(p)
    emit_compute(p, nsteps)
    emit_loader(p, 'A', nsteps)
    emit_loader(p, 'B', nsteps)
    if nsteps > IDX['A2']:
        emit_attention(p)
    p('L_END:')
    p('s_endpgm')
    nfix = p.fix_hazards()
    hdr = open('cdna_kernels/%s.s.ref' % NAME).read().split('\n')
    head = [l for l in hdr if l.startswith(';') and '@launch' not in l and 'Override launch' not in l and 'Harness parses' not in l][:12]
    out = '\n'.join(head) + '\n'
    out += f'; @launch grid=(256,1,1) block=(512,1,1) lds={LDS_BYTES}\n'
    out += f""".amdgcn_target "amdgcn-amd-amdhsa--gfx950"
.text
.globl {NAME}_kernel
.p2align 8
.type {NAME}_kernel,@function
{NAME}_kernel:
"""
    out += p.text()
    out += f""".section .rodata,"a"
.p2align 6
.amdhsa_kernel {NAME}_kernel
  .amdhsa_next_free_vgpr 256
  .amdhsa_next_free_sgpr 102
  .amdhsa_accum_offset 256
  .amdhsa_group_segment_fixed_size 0
  .amdhsa_kernarg_size 88
  .amdhsa_user_sgpr_count 2
  .amdhsa_user_sgpr_kernarg_segment_ptr 1
  .amdhsa_system_sgpr_workgroup_id_x 1
.end_amdhsa_kernel
"""
    return out, nfix

if __name__ == '__main__':
    stop = sys.argv[2] if len(sys.argv) > 2 and sys.argv[2] != 'all' else None
    out, nfix = generate(stop)
    open(sys.argv[1], 'w').write(out)
    print('written', sys.argv[1], 'lines', out.count('\n'), 'hazard nops', nfix)
```

```python
import sys, math, struct
sys.path.insert(0, 'gen')
from asmlib import Prog

NAME = 'recurrent_scan__sliding_block__mixer_s_mlp__prompt'

def f2u(x):
    return struct.unpack('<I', struct.pack('<f', x))[0]
def hexf(x):
    return '0x%08x' % f2u(x)

MB = 1 << 20
G_OFF, Q_OFF, K_OFF, V_OFF, X1_OFF, O_OFF, H2_OFF = 0, 2*MB, 4*MB, 6*MB, 8*MB, 10*MB, 12*MB
FL_OFF = 20*MB
FG_OFF = FL_OFF
FQ_OFF = FL_OFF + 0x2000
FX_OFF = FL_OFF + 0x4000
FO_OFF = FL_OFF + 0x6000
FH_OFF = FL_OFF + 0x8000
EP_OFF = FL_OFF + 0x10000
WS_REC = 32*MB

NA, NB = 4, 5
SLOT_A, SLOT_B = 17408, 16384
RA = 0
RB = NA*SLOT_A
QL = RB + NB*SLOT_B
TBL = QL + 8192
T_RSTD, T_MR, T_RSTDB, T_MRB = TBL, TBL+512, TBL+1024, TBL+1536
T_CS = TBL + 2048
T_EP = TBL + 2560
LDS_BYTES = 163840

S_X, S_WQKV, S_WO, S_W1, S_W2, S_W3, S_W4, S_OUT, S_WS, S_DBG = [4+4*i for i in range(10)]
def srd(b): return 's[%d:%d]' % (b, b+3)
sW, sV, sJ, sR, sC, sHP, sRA, sHEAD, sQB, sR3, sC3, sSH, sEP, sIDLE, sA = range(44, 59)
sROLE = 59
sT0, sT1, sT2, sT3, sT4, sT5 = range(60, 66)
sNMIN = 66
sB0 = 68
sP0 = 80

CFG = dict(stop_after=99, sc1=True, dbg_stamps=False)

def sc():
    return ' sc1' if CFG['sc1'] else ''

class Chunk:
    def __init__(self, kind, t, dep=None, earliest=-1, n=8, **kw):
        self.kind, self.t, self.dep, self.earliest, self.n = kind, t, dep, earliest, n
        self.kw = kw

def build_steps():
    steps = []
    def add(task, t, A, B): steps.append(dict(task=task, t=t, A=A, B=B))
    for t in range(4): add('B1', t, Chunk('x68', t, n=9), Chunk('w64', t, srd=S_W1))
    for t in range(8): add('A1', t, Chunk('x128', t), Chunk('wqkv', t, n=6))
    for t in range(4): add('B2', t, Chunk('blk64', t, dep='FG', base=G_OFF, KB=32), Chunk('w64', t, srd=S_W2))
    add('A2', 0, Chunk('kq', 0, dep='FQ', n=12), Chunk('v', 0, dep='FQ'))
    for t in range(8): add('B3', t, Chunk('x1', t, dep='FX'), Chunk('w3', t))
    for t in range(4): add('A3', t, Chunk('blk64', t, dep='FO', base=O_OFF, KB=32), Chunk('w64', t, srd=S_WO))
    for t in range(14): add('B4', t, Chunk('blk64', t, dep='FH', base=H2_OFF, KB=112), Chunk('w64', t, srd=S_W4))
    return steps

STEPS = build_steps()
IDX = {}
for i, s in enumerate(STEPS):
    IDX.setdefault(s['task'], i)
def set_earliest():
    for i, s in enumerate(STEPS):
        for ring in 'AB':
            ch = s[ring]
            if ch.dep == 'FG': ch.earliest = IDX['A1'] + 3
            if ch.dep == 'FQ': ch.earliest = IDX['B2'] + 2
            if ch.dep == 'FX': ch.earliest = IDX['A2']
            if ch.dep == 'FO': ch.earliest = IDX['B3'] + 2
            if ch.dep == 'FH': ch.earliest = IDX['A3'] + 1
set_earliest()
SIGNAL_STEP = dict(FG=IDX['A1'] + 1, FQ=IDX['B2'] + 1, FX=IDX['A2'], FO=IDX['B3'] + 1, FH=IDX['A3'] + 1)

def schedule(ring, N, nsteps):
    issue = {t: [] for t in range(-1, nsteps)}
    done = set()
    for t in range(-1, nsteps):
        for idx in range(nsteps):
            if idx in done: continue
            ch = STEPS[idx][ring]
            if idx <= t + N - 1 and ch.earliest <= t:
                issue[t].append(idx); done.add(idx)
    for idx in range(nsteps):
        assert idx in done, (ring, idx)
        it = [t for t in issue if idx in issue[t]][0]
        assert it <= idx - 1, ('chunk issued too late', ring, idx, it)
        d = STEPS[idx][ring].dep
        if d: assert SIGNAL_STEP[d] <= it, ('deadlock risk', d, SIGNAL_STEP[d], it)
    return issue

def slot_addr(ring, idx):
    return (RA + (idx % NA)*SLOT_A) if ring == 'A' else (RB + (idx % NB)*SLOT_B)


def emit_prologue(p):
    p(f"""
    s_cmp_ge_u32 s2, 256
    s_cbranch_scc1 L_END
    s_load_dwordx16 s[64:79], s[0:1], 0
    s_load_dwordx4 s[80:83], s[0:1], 64
    s_load_dwordx2 s[84:85], s[0:1], 80
    v_lshrrev_b32 v2, 6, v0
    v_and_b32 v1, 63, v0
    v_readfirstlane_b32 s{sW}, v2
    s_and_b32 s{sV}, s2, 7
    s_lshr_b32 s{sJ}, s2, 3
    s_lshr_b32 s{sT0}, s{sJ}, 3
    s_lshl_b32 s{sT1}, s{sV}, 2
    s_add_u32 s{sR}, s{sT1}, s{sT0}
    s_mov_b32 s{sHEAD}, s{sR}
    s_and_b32 s{sC}, s{sJ}, 7
    s_mov_b32 s{sQB}, s{sC}
    s_lshr_b32 s{sT0}, s{sJ}, 4
    s_lshl_b32 s{sT1}, s{sV}, 1
    s_add_u32 s{sHP}, s{sT1}, s{sT0}
    s_and_b32 s{sRA}, s{sJ}, 15
    s_cmp_ge_u32 s{sJ}, 14
    s_cselect_b32 s{sT0}, 1, 0
    s_add_u32 s{sR3}, s{sT1}, s{sT0}
    s_mul_i32 s{sT0}, s{sT0}, 14
    s_sub_u32 s{sC3}, s{sJ}, s{sT0}
    s_cmp_ge_u32 s{sJ}, 28
    s_cselect_b32 s{sIDLE}, 1, 0
    s_lshr_b32 s{sT0}, s{sC}, 1
    s_lshr_b32 s{sT1}, s{sT0}, 1
    s_add_u32 s{sT1}, s{sT1}, 1
    s_sub_u32 s{sT2}, 0, s{sT1}
    s_bitcmp1_b32 s{sT0}, 0
    s_cselect_b32 s{sSH}, s{sT2}, s{sT1}
    s_and_b32 s{sA}, s{sW}, 1
    s_waitcnt lgkmcnt(0)
    """)
    for (d, src_, n) in [(S_X, 64, 2097152), (S_WQKV, 66, 1572864), (S_WO, 68, 524288), (S_W1, 72, 524288),
                         (S_W2, 74, 524288), (S_W3, 76, 1835008), (S_W4, 78, 1835008), (S_OUT, 80, 2097152),
                         (S_WS, 84, WS_REC), (S_DBG, 82, 256)]:
        p(f"""
        s_mov_b32 s{d}, s{src_}
        s_and_b32 s{d+1}, s{src_+1}, 0xffff
        s_mov_b32 s{d+2}, {n}
        s_mov_b32 s{d+3}, 0x20000
        """)
    p(f"""
    s_cmp_lt_u32 s{sW}, 4
    s_cbranch_scc1 L_COMPUTE
    s_cmp_lt_u32 s{sW}, 6
    s_cbranch_scc1 L_LOADA
    s_branch L_LOADB
    """)

class VmTrack:
    def __init__(self): self.ops = []
    def add(self, tag, n=1): self.ops += [tag]*n
    def wait_count(self, tag):
        last = -1
        for i, t in enumerate(self.ops):
            if t == tag: last = i
        if last < 0: return None
        return len(self.ops) - 1 - last
    def waited(self, cnt):
        self.ops = self.ops[len(self.ops)-cnt:] if cnt > 0 else []
    def emit_wait(self, p, tag):
        c = self.wait_count(tag)
        if c is None: return
        assert c <= 63, c
        p(f's_waitcnt vmcnt({c})')
        self.waited(c)

ST_BASE = TBL + 2600
ST_OFF = 24*MB
def stamp(p, role, idx):
    if not CFG['dbg_stamps']: return
    a = ST_BASE + (role*120 + idx)*4
    p(f"""
    s_memtime s[90:91]
    s_waitcnt lgkmcnt(0)
    v_mov_b32 v254, s90
    v_mov_b32 v255, {a}
    ds_write_b32 v255, v254
    """)
def barrier(p, role, i):
    stamp(p, role, 2*(i+1))
    p('s_barrier')
    stamp(p, role, 2*(i+1)+1)

uid = [0]
def newlabel(s):
    uid[0] += 1
    return f'L_{s}_{uid[0]}'

def emit_poll(p, vm, dep, vtmp, voff):
    L = newlabel('poll'); D = newlabel('polld')
    p(f"""
    s_mov_b32 s{sT5}, 0x10000
    {L}:
    buffer_load_dword v{vtmp}, v{voff}, {srd(S_WS)}, 0 offen sc1
    s_waitcnt vmcnt(0)
    v_cmp_ne_u32 vcc, s{sEP}, v{vtmp}
    s_cbranch_vccz {D}
    s_sub_u32 s{sT5}, s{sT5}, 1
    s_cmp_eq_u32 s{sT5}, 0
    s_cbranch_scc1 {D}
    s_sleep 1
    s_branch {L}
    {D}:
    """)
    vm.waited(0)

def emit_signal(p, soff_expr_setup, vep):
    p(soff_expr_setup)
    p(f"""
    s_mov_b64 exec, 1
    buffer_store_dword v{vep}, off, {srd(S_WS)}, s{sT4}{sc()}
    s_mov_b64 exec, -1
    """)

sHW = 67
C_GELU1 = -2.0*math.log2(math.e)*math.sqrt(2.0/math.pi)
C_GELU2 = C_GELU1*0.044715
LOG2E = math.log2(math.e)
QSCALE = 0.25*LOG2E
NEG = -1.0e30

def lane_vals(p, m, h, li, g):
    p(f"""
    v_and_b32 v{m}, 31, v1
    v_lshrrev_b32 v{h}, 5, v1
    v_and_b32 v{li}, 15, v1
    v_lshrrev_b32 v{g}, 4, v1
    """)

def tr_lanepart(p, dst, m, h, li, g, t0, t1, kmul, stride, cbexpr_reg, swz):
    p(f"""
    v_lshrrev_b32 v{t0}, 2, v{li}
    v_mul_u32_u24 v{t1}, {kmul}, v{h}
    v_add_u32 v{t1}, v{t1}, v{t0}
    v_mul_u32_u24 v{dst}, {stride}, v{t1}
    """)
    if swz == 'w64':
        p(f"""
        v_lshrrev_b32 v{t1}, 3, v{li}
        v_xor_b32 v{t1}, s{cbexpr_reg}, v{t1}
        v_lshl_add_u32 v{dst}, v{t1}, 6, v{dst}
        """)
    elif swz == 'w3':
        p(f"""
        v_xor_b32 v{t1}, s{cbexpr_reg}, v{t0}
        v_lshl_add_u32 v{dst}, v{t1}, 6, v{dst}
        """)
    elif cbexpr_reg is not None:
        p(f"""
        v_mov_b32 v{t1}, s{cbexpr_reg}
        v_lshl_add_u32 v{dst}, v{t1}, 6, v{dst}
        """)
    p(f"""
    v_and_b32 v{t1}, 1, v{g}
    v_lshl_add_u32 v{dst}, v{t1}, 5, v{dst}
    v_and_b32 v{t1}, 3, v{li}
    v_lshl_add_u32 v{dst}, v{t1}, 3, v{dst}
    """)

HS1, HS2, HCS, HONE, HEP = 23, 24, 25, 26, 27
HB1R, HA1R, HB3R = 20, 21, 22
HB1C, HA1C, HB3C = 28, 29, 30
HROW = 31
HT = 48

def rowstat_reads(p, addr_list):
    n = len(addr_list)
    for i, (va, off) in enumerate(addr_list):
        p(f'ds_read_b128 v[{HT+4*i}:{HT+4*i+3}], v{va} offset:{off}')
    for i in range(n):
        p(f's_waitcnt lgkmcnt({n-1-i})')
        for q in range(4):
            r = HT+4*i+q
            p(f'v_dot2c_f32_bf16 v{HS1}, v{r}, v{HONE}')
            p(f'v_dot2c_f32_bf16 v{HS2}, v{r}, v{r}')

def colsum_reads(p, va, offs):
    n = len(offs)
    b = HT + 40
    for i, off in enumerate(offs):
        p(f'ds_read_b64_tr_b16 v[{b+2*i}:{b+2*i+1}], v{va} offset:{off}')
    for i in range(n):
        p(f's_waitcnt lgkmcnt({n-1-i})')
        p(f'v_dot2c_f32_bf16 v{HCS}, v{b+2*i}, v{HONE}')
        p(f'v_dot2c_f32_bf16 v{HCS}, v{b+2*i+1}, v{HONE}')

def halfsum(p, r, t):
    p(f"""
    v_mov_b32 v{t}, v{r}
    s_nop 1
    v_permlane32_swap_b32 v{r}, v{t}
    v_add_f32 v{r}, v{r}, v{t}
    """)

def rowstat_final(p, vrowaddr, second):
    t = HT
    halfsum(p, HS1, t); halfsum(p, HS2, t+1)
    p(f"""
    v_mul_f32 v{HS1}, {hexf(1/512)}, v{HS1}
    v_mul_f32 v{HS2}, {hexf(1/512)}, v{HS2}
    v_fma_f32 v{t}, -v{HS1}, v{HS1}, v{HS2}
    v_max_f32 v{t}, 0, v{t}
    v_add_f32 v{t+1}, {hexf(1e-5)}, v{t}
    v_rsq_f32 v{t+2}, v{t+1}
    s_nop 0
    v_mul_f32 v{t+3}, v{HS1}, v{t+2}
    ds_write_b32 v{vrowaddr}, v{t+2} offset:0
    ds_write_b32 v{vrowaddr}, v{t+3} offset:512
    """)
    if second:
        p(f"""
        v_mul_f32 v{t+4}, v{t+2}, v{t+2}
        v_mul_f32 v{t+4}, v{t+4}, v{t}
        v_add_f32 v{t+4}, {hexf(1e-5)}, v{t+4}
        v_rsq_f32 v{t+5}, v{t+4}
        s_nop 0
        v_mul_f32 v{t+5}, v{t+5}, v{t+2}
        v_mul_f32 v{t+6}, v{HS1}, v{t+5}
        ds_write_b32 v{vrowaddr}, v{t+5} offset:1024
        ds_write_b32 v{vrowaddr}, v{t+6} offset:1536
        """)

def colsum_final(p, vaddr):
    halfsum(p, HCS, HT+8)
    p(f'ds_write_b32 v{vaddr}, v{HCS}')

def helper_stats(p, prog, i):
    s = STEPS[i]; task, t = s['task'], s['t']
    sa, sb = slot_addr('A', i), slot_addr('B', i)
    va, vb = HT+60, HT+61
    if task == 'B1':
        if t == 0:
            p(f'v_mov_b32 v{HS1}, 0\nv_mov_b32 v{HS2}, 0\nv_mov_b32 v{HCS}, 0')
        p(f'v_add_u32 v{va}, {sa}, v{HB1R}')
        al = []
        for k in range(8):
            p(f'v_xor_b32 v{HT+62+k}, {k<<4}, v{va}')
            al.append((HT+62+k, 0))
        rowstat_reads(p, al)
        if prog == 'B':
            p(f'v_add_u32 v{vb}, {sb}, v{HB1C}')
            colsum_reads(p, vb, [ks*2048+o for ks in range(8) for o in (0, 512)][:8])
            colsum_reads(p, vb, [ks*2048+o for ks in range(8) for o in (0, 512)][8:])
        if t == 3:
            rowstat_final(p, HROW, True)
            if prog == 'B':
                colsum_final(p, 33)
            p('s_waitcnt lgkmcnt(0)')
    elif task == 'A1':
        if t == 0:
            p(f'v_mov_b32 v{HS1}, 0\nv_mov_b32 v{HS2}, 0\nv_mov_b32 v{HCS}, 0')
        p(f'v_add_u32 v{va}, {sa}, v{HA1R}')
        al = []
        for k in range(4):
            p(f'v_xor_b32 v{HT+62+k}, {k<<4}, v{va}')
            al.append((HT+62+k, 0))
        rowstat_reads(p, al)
        p(f'v_add_u32 v{vb}, {sb}, v{HA1C}')
        colsum_reads(p, vb, [ks*3072+o for ks in range(4) for o in (0, 768)])
        if t == 7:
            rowstat_final(p, 32, False)
            L = newlabel('a1cs')
            p(f's_cmp_eq_u32 s{sHW}, 3\ns_cbranch_scc1 {L}')
            colsum_final(p, 34)
            p(f'{L}:')
            p('s_waitcnt lgkmcnt(0)')
    elif task == 'B3':
        if t == 0:
            p(f'v_mov_b32 v{HS1}, 0\nv_mov_b32 v{HS2}, 0\nv_mov_b32 v{HCS}, 0')
        p(f'v_add_u32 v{va}, {sa}, v{HB3R}')
        rowstat_reads(p, [(va, kb*1024) for kb in range(4)])
        p(f'v_add_u32 v{vb}, {sb}, v{HB3C}')
        colsum_reads(p, vb, [ks*4096+o for ks in range(4) for o in (0, 1024)])
        if t == 7:
            rowstat_final(p, 32, False)
            colsum_final(p, 34)
            p('s_waitcnt lgkmcnt(0)')

def helper_common_setup(p, prog):
    m, h, li, g, t0, t1 = 48, 49, 50, 51, 52, 53
    lane_vals(p, m, h, li, g)
    p(f"""
    s_sub_u32 s{sHW}, s{sW}, 4
    v_mov_b32 v{HONE}, 0x3f803f80
    v_lshlrev_b32 v13, 4, v1
    """)
    if prog == 'A':
        p(f's_lshl_b32 s{sT0}, s{sA}, 5\nv_add_u32 v{t0}, s{sT0}, v{m}')
    else:
        p(f'v_and_b32 v{t0}, 3, v{m}\nv_add_u32 v{t0}, 64, v{t0}')
    p(f"""
    v_lshlrev_b32 v{HROW}, 2, v{t0}
    v_add_u32 v{HROW}, {TBL}, v{HROW}
    v_and_b32 v{t1}, 15, v{t0}
    v_lshlrev_b32 v54, 3, v{h}
    v_xor_b32 v{t1}, v{t1}, v54
    v_lshlrev_b32 v{t1}, 4, v{t1}
    v_lshl_add_u32 v{HB1R}, v{t0}, 8, v{t1}
    """)
    p(f"""
    s_lshl_b32 s{sT0}, s{sHW}, 5
    v_add_u32 v{t0}, s{sT0}, v{m}
    v_lshlrev_b32 v32, 2, v{t0}
    v_add_u32 v32, {TBL}, v32
    v_lshrrev_b32 v{t1}, 1, v{t0}
    v_and_b32 v{t1}, 7, v{t1}
    v_lshlrev_b32 v54, 2, v{h}
    v_xor_b32 v{t1}, v{t1}, v54
    v_lshlrev_b32 v{t1}, 4, v{t1}
    v_lshl_add_u32 v{HA1R}, v{t0}, 7, v{t1}
    s_lshl_b32 s{sT0}, s{sHW}, 12
    v_add_u32 v{HB3R}, s{sT0}, v13
    """)
    tr_lanepart(p, HB1C, m, h, li, g, t0, t1, 8, 128, sA, 'w64')
    p(f's_min_u32 s{sT1}, s{sHW}, 2')
    tr_lanepart(p, HA1C, m, h, li, g, t0, t1, 8, 192, sT1, None)
    tr_lanepart(p, HB3C, m, h, li, g, t0, t1, 8, 256, sHW, 'w3')
    p(f"""
    s_lshl_b32 s{sT0}, s{sA}, 5
    v_add_u32 v33, s{sT0}, v{m}
    v_lshlrev_b32 v33, 2, v33
    v_add_u32 v33, {T_CS}, v33
    s_lshl_b32 s{sT0}, s{sHW}, 5
    v_add_u32 v34, s{sT0}, v{m}
    v_lshlrev_b32 v34, 2, v34
    v_add_u32 v34, {T_CS}, v34
    """)
    p(f"""
    s_or_b32 s{sT0}, s{sQB}, s{sA}
    s_cmp_eq_u32 s{sT0}, 0
    s_cselect_b32 s{sT0}, 0x40000000, 0
    v_add_u32 v14, s{sT0}, v13
    """)
    p(f"""
    v_lshrrev_b32 v{t0}, 2, v{li}
    s_lshl_b32 s{sT0}, s{sQB}, 1
    s_sub_u32 s{sT0}, s{sT0}, 2
    v_add_u32 v{t0}, s{sT0}, v{t0}
    v_max_i32 v{t0}, 0, v{t0}
    s_lshr_b32 s{sT0}, s{sHEAD}, 1
    s_lshl_b32 s{sT0}, s{sT0}, 4
    v_add_u32 v{t0}, s{sT0}, v{t0}
    v_and_b32 v{t1}, 3, v{li}
    v_lshl_add_u32 v{t0}, v{t0}, 2, v{t1}
    v_lshlrev_b32 v16, 2, v{t0}
    v_add_u32 v16, {FQ_OFF}, v16
    """)

def emit_dma(p, vm, ring, idx):
    ch = STEPS[idx][ring]; t = ch.t; sl = slot_addr(ring, idx); tag = (ring, idx)
    x = ' sc1' if ch.dep else ''
    def dma(srd_, v, soff, m0expr, imm=0, extra=''):
        p(m0expr)
        p(f'buffer_load_dwordx4 v{v}, {srd(srd_)}, {soff} offen offset:{imm}{extra} lds')
        vm.add(tag)
    k = ch.kind
    if k == 'x68':
        p(f's_mov_b32 s{sT0}, {t*256}')
        for n in range(9):
            m0 = f's_add_u32 m0, s{sB0}, {sl+n*1024}' if n < 8 else f's_add_u32 m0, s{sB0+1}, {sl+8192}'
            dma(S_X, 2+n, f's{sT0}', m0)
    elif k == 'x128':
        for n in range(8):
            p(f's_add_u32 s{sT0}, s{sB0+2}, {n*8192+t*128}')
            dma(S_X, 11+(n & 1), f's{sT0}', f's_add_u32 m0, s{sB0+1}, {sl+n*1024}')
    elif k == 'blk64':
        sb = {G_OFF: sB0+3, O_OFF: sB0+4, H2_OFF: sB0+5}[ch.kw['base']]
        for u in range(2):
            p(f's_add_u32 s{sT0}, s{sb}, {t*8192+u*4096}')
            p(f's_add_u32 m0, s{sB0+1}, {sl+u*4096}')
            for n in range(4):
                p(f'buffer_load_dwordx4 v13, {srd(S_WS)}, s{sT0} offen offset:{n*1024}{x} lds'); vm.add(tag)
    elif k == 'x1':
        for u in range(2):
            p(f's_add_u32 s{sT0}, s{sB0+6}, {u*32768+t*4096}')
            p(f's_add_u32 m0, s{sB0+1}, {sl+u*4096}')
            for n in range(4):
                p(f'buffer_load_dwordx4 v13, {srd(S_WS)}, s{sT0} offen offset:{n*1024}{x} lds'); vm.add(tag)
    elif k == 'kq':
        for u in range(2):
            p(f's_add_u32 s{sT0}, s{sB0+7}, {u*4096}')
            p(f's_add_u32 m0, s{sB0+1}, {sl+u*4096}')
            for n in range(4):
                p(f'buffer_load_dwordx4 v14, {srd(S_WS)}, s{sT0} offen offset:{n*1024}{x} lds'); vm.add(tag)
        p(f's_lshr_b32 s{sT1}, s{sB0+1}, 1')
        p(f's_add_u32 m0, s{sT1}, {QL}')
        for n in range(4):
            p(f'buffer_load_dwordx4 v13, {srd(S_WS)}, s{sB0+8} offen offset:{n*1024}{x} lds'); vm.add(tag)
    elif k == 'v':
        for u in range(2):
            p(f's_add_u32 s{sT0}, s{sB0+7}, {u*4096}')
            p(f's_add_u32 m0, s{sB0+1}, {sl+u*4096}')
            for n in range(4):
                p(f'buffer_load_dwordx4 v14, {srd(S_WS)}, s{sT0} offen offset:{n*1024}{x} lds'); vm.add(tag)
    elif k == 'w64':
        for n in range(8):
            p(f's_add_u32 s{sT0}, s{sB0+2}, {t*131072+n*8192}')
            dma(ch.kw['srd'], 2, f's{sT0}', f's_add_u32 m0, s{sB0+1}, {sl+n*1024}')
    elif k == 'wqkv':
        for n in range(6):
            p(f's_add_u32 s{sT0}, s{sB0+3}, {t*196608+(n//3)*49152}')
            dma(S_WQKV, 3+(n % 3), f's{sT0}', f's_add_u32 m0, s{sB0+4}, {sl+n*1024}')
    elif k == 'w3':
        for n in range(8):
            p(f's_add_u32 s{sT0}, s{sB0+5}, {t*229376+n*14336}')
            dma(S_W3, 6, f's{sT0}', f's_add_u32 m0, s{sB0+1}, {sl+n*1024}')
    else:
        raise ValueError(k)

def read_epoch_lds(p):
    p(f"""
    v_mov_b32 v{HT}, {T_EP}
    ds_read_b32 v{HEP}, v{HT}
    s_waitcnt lgkmcnt(0)
    v_readfirstlane_b32 s{sEP}, v{HEP}
    """)

def emit_loader(p, prog, nsteps):
    ring = prog; N = NA if prog == 'A' else NB
    issue = schedule(ring, N, len(STEPS))
    vm = VmTrack()
    p(f'L_LOAD{prog}:')
    p(f's_mov_b32 s{sROLE}, {1 if prog == "A" else 2}')
    m, h, li, g, t0, t1 = 48, 49, 50, 51, 52, 53
    if prog == 'A':
        p(f"""
        s_mul_i32 s{sB0}, s{sA}, 9216
        s_lshl_b32 s{sB0+1}, s{sA}, 13
        v_lshrrev_b32 v{g}, 4, v1
        v_and_b32 v{li}, 15, v1
        s_lshl_b32 s{sT0}, s{sR}, 6
        s_sub_u32 s{sT0}, s{sT0}, 2
        s_mul_i32 s{sT1}, s{sA}, 9
        """)
        for n in range(9):
            p(f"""
            s_add_u32 s{sT2}, s{sT1}, {n}
            s_min_u32 s{sT2}, s{sT2}, 16
            s_lshl_b32 s{sT2}, s{sT2}, 2
            v_add_u32 v{t0}, s{sT2}, v{g}
            v_and_b32 v{t1}, 15, v{t0}
            v_xor_b32 v{t1}, v{t1}, v{li}
            v_add_u32 v{t0}, s{sT0}, v{t0}
            v_lshlrev_b32 v{t0}, 10, v{t0}
            v_lshl_add_u32 v{2+n}, v{t1}, 4, v{t0}
            """)
    else:
        p(f"""
        s_lshl_b32 s{sB0+1}, s{sA}, 13
        s_lshl_b32 s{sB0+2}, s{sA}, 16
        v_lshrrev_b32 v{t0}, 3, v1
        v_lshlrev_b32 v2, 10, v{t0}
        v_lshrrev_b32 v{t0}, 4, v1
        v_and_b32 v{t0}, 1, v{t0}
        v_lshlrev_b32 v{t0}, 2, v{t0}
        v_and_b32 v{t1}, 7, v1
        v_xor_b32 v{t0}, v{t0}, v{t1}
        v_lshl_add_u32 v2, v{t0}, 4, v2
        s_lshl_b32 s{sT0}, s{sC}, 7
        v_add_u32 v2, s{sT0}, v2
        """)
    for idx in issue[-1]:
        emit_dma(p, vm, ring, idx)
    if prog == 'A':
        p(f"""
        v_lshrrev_b32 v{t0}, 3, v1
        v_lshlrev_b32 v{t0}, 10, v{t0}
        v_lshrrev_b32 v{g}, 4, v1
        v_and_b32 v{t1}, 7, v1
        v_xor_b32 v54, v{t1}, v{g}
        v_lshl_add_u32 v11, v54, 4, v{t0}
        v_add_u32 v54, 4, v{g}
        v_and_b32 v54, 7, v54
        v_xor_b32 v54, v{t1}, v54
        v_lshl_add_u32 v12, v54, 4, v{t0}
        s_lshl_b32 s{sT0}, s{sRA}, 17
        s_lshl_b32 s{sT1}, s{sA}, 16
        s_add_u32 s{sB0+2}, s{sT0}, s{sT1}
        s_lshl_b32 s{sT0}, s{sR}, 1
        s_add_u32 s{sT0}, s{sT0}, s{sA}
        s_lshl_b32 s{sT1}, s{sT0}, 15
        s_add_u32 s{sB0+3}, s{sT1}, {G_OFF}
        s_add_u32 s{sB0+4}, s{sT1}, {O_OFF}
        s_mul_i32 s{sT1}, s{sT0}, {112*1024}
        s_add_u32 s{sB0+5}, s{sT1}, {H2_OFF}
        s_lshl_b32 s{sT0}, s{sR3}, 1
        s_add_u32 s{sT0}, s{sT0}, s{sA}
        s_lshl_b32 s{sT0}, s{sT0}, 16
        s_add_u32 s{sB0+6}, s{sT0}, {X1_OFF}
        s_lshl_b32 s{sT0}, s{sHEAD}, 3
        s_add_u32 s{sT0}, s{sT0}, s{sQB}
        s_lshl_b32 s{sT0}, s{sT0}, 13
        s_add_u32 s{sT1}, s{sT0}, s{sB0+1}
        s_add_u32 s{sB0+7}, s{sT1}, {K_OFF-8192}
        s_lshr_b32 s{sT1}, s{sB0+1}, 1
        s_add_u32 s{sT1}, s{sT1}, s{sT0}
        s_add_u32 s{sB0+8}, s{sT1}, {Q_OFF}
        """)
        p(f"""
        v_and_b32 v{t0}, 31, v1
        v_lshlrev_b32 v{t0}, 2, v{t0}
        s_lshl_b32 s{sT0}, s{sR}, 7
        s_add_u32 s{sT0}, s{sT0}, {FG_OFF}
        v_add_u32 v15, s{sT0}, v{t0}
        v_lshlrev_b32 v{t0}, 2, v1
        s_lshl_b32 s{sT0}, s{sR3}, 8
        s_add_u32 s{sT0}, s{sT0}, {FX_OFF}
        v_add_u32 v17, s{sT0}, v{t0}
        s_lshl_b32 s{sT0}, s{sR}, 8
        s_add_u32 s{sT0}, s{sT0}, {FO_OFF}
        v_add_u32 v18, s{sT0}, v{t0}
        v_min_u32 v{t0}, 55, v1
        v_lshlrev_b32 v{t0}, 2, v{t0}
        s_lshr_b32 s{sT0}, s{sR}, 1
        s_lshl_b32 s{sT0}, s{sT0}, 8
        s_add_u32 s{sT0}, s{sT0}, {FH_OFF}
        v_add_u32 v19, s{sT0}, v{t0}
        """)
    else:
        for ip in range(3):
            p(f"""
            v_add_u32 v{t0}, {64*ip}, v1
            v_mul_u32_u24 v{t1}, 43691, v{t0}
            v_lshrrev_b32 v{t1}, 19, v{t1}
            v_mul_u32_u24 v54, 12, v{t1}
            v_sub_u32 v54, v{t0}, v54
            v_mul_u32_u24 v{3+ip}, 3072, v{t1}
            v_lshrrev_b32 v55, 2, v54
            v_lshl_add_u32 v{3+ip}, v55, 10, v{3+ip}
            v_and_b32 v55, 3, v54
            v_lshl_add_u32 v{3+ip}, v55, 4, v{3+ip}
            s_lshl_b32 s{sT0}, s{sHP}, 6
            v_add_u32 v{3+ip}, s{sT0}, v{3+ip}
            """)
        p(f"""
        s_mul_i32 s{sB0+3}, s{sA}, 98304
        s_mul_i32 s{sB0+4}, s{sA}, 6144
        s_mul_i32 s{sB0+5}, s{sA}, 114688
        v_lshrrev_b32 v{t0}, 4, v1
        v_mul_u32_u24 v6, 3584, v{t0}
        v_lshlrev_b32 v{t0}, 2, v{t0}
        v_and_b32 v{t1}, 15, v1
        v_xor_b32 v{t0}, v{t0}, v{t1}
        v_lshl_add_u32 v6, v{t0}, 4, v6
        s_lshl_b32 s{sT0}, s{sC3}, 8
        s_lshl_b32 s{sT1}, s{sIDLE}, 30
        s_add_u32 s{sT0}, s{sT0}, s{sT1}
        v_add_u32 v6, s{sT0}, v6
        s_lshl_b32 s{sT0}, s{sHEAD}, 3
        s_add_u32 s{sT0}, s{sT0}, s{sQB}
        s_lshl_b32 s{sT0}, s{sT0}, 13
        s_add_u32 s{sT1}, s{sT0}, s{sB0+1}
        s_add_u32 s{sB0+7}, s{sT1}, {V_OFF-8192}
        """)
    helper_common_setup(p, prog)
    vm.emit_wait(p, (ring, 0))
    role = 1 if prog == 'A' else 2
    barrier(p, role, -1)
    polled = set()
    FLAGV = dict(FG=15, FQ=16, FX=17, FO=18, FH=19)
    def do_issue(i):
        for idx in issue[i]:
            ch = STEPS[idx][ring]
            if ch.dep and ch.dep not in polled:
                emit_poll(p, vm, ch.dep, HT, FLAGV[ch.dep]); polled.add(ch.dep)
            emit_dma(p, vm, ring, idx)
    i = 0
    b3_first, b3_last = IDX['B3'], IDX['A3']-1
    while i < nsteps:
        s = STEPS[i]
        if i == 6: read_epoch_lds(p)
        if s['task'] == 'A2':
            if prog == 'B': do_issue(i)
            p(f's_branch L_ATT')
            p(f'L_ATT_RET_{prog}:')
            vm.add('ostore')
            if nsteps > b3_first:
                Lidle = f'L_IDLE_{prog}'
                p(f's_cmp_eq_u32 s{sIDLE}, 1\ns_cbranch_scc1 {Lidle}')
            if prog == 'A': do_issue(i)
            if i+1 < len(STEPS): vm.emit_wait(p, (ring, i+1))
            if prog == 'A':
                vm.emit_wait(p, 'ostore'); signal_fo(p)
            barrier(p, role, i)
            i += 1
            continue
        do_issue(i)
        helper_stats(p, prog, i)
        if prog == 'B' and i == b3_first:
            vm.emit_wait(p, 'ostore'); signal_fo(p)
        if i+1 < len(STEPS): vm.emit_wait(p, (ring, i+1))
        if i == b3_last:
            state_at_a3 = list(vm.ops)
        barrier(p, role, i)
        if i == b3_last:
            p(f'L_A3_ENTRY_{prog}:')
        i += 1
    if CFG['dbg_stamps']: p('s_barrier')
    p('s_branch L_END')
    if nsteps > b3_last:
        p(f'L_IDLE_{prog}:')
        p('s_waitcnt vmcnt(0)')
        signal_fo(p)
        p('s_barrier')
        vm2 = VmTrack()
        pol2 = set()
        todo = [idx for t in range(-1, b3_last+1) for idx in issue[t] if idx > b3_last]
        for idx in todo:
            ch = STEPS[idx][ring]
            if ch.dep and ch.dep not in pol2:
                emit_poll(p, vm2, ch.dep, HT, FLAGV[ch.dep]); pol2.add(ch.dep)
            emit_dma(p, vm2, ring, idx)
        vm2.emit_wait(p, (ring, b3_last+1))
        assert vm2.ops == state_at_a3, (vm2.ops, state_at_a3)
        p('s_barrier')
        p(f's_branch L_A3_ENTRY_{prog}')
    elif nsteps > b3_first:
        p(f'L_IDLE_{prog}:')
        p('s_waitcnt vmcnt(0)')
        signal_fo(p)
        p('s_branch L_END')

def signal_fo(p):
    emit_signal(p, f"""
    s_lshl_b32 s{sT4}, s{sQB}, 3
    s_add_u32 s{sT4}, s{sT4}, s{sW}
    s_lshl_b32 s{sT4}, s{sT4}, 5
    s_add_u32 s{sT4}, s{sT4}, s{sHEAD}
    s_lshl_b32 s{sT4}, s{sT4}, 2
    s_add_u32 s{sT4}, s{sT4}, {FO_OFF}
    """, HEP)

AQ, AK, AV, AS, ANM, ABD, ABO, AP, AO, AT = 48, 52, 88, 104, 136, 152, 168, 184, 192, 208
AE = 224
def emit_attention(p):
    i = IDX['A2']
    sa, sb = slot_addr('A', i), slot_addr('B', i)
    t = AT
    p('L_ATT:')
    p(f"""
    v_lshlrev_b32 v{t}, 4, v1
    s_lshl_b32 s{sT0}, s{sW}, 10
    v_add_u32 v{t+1}, s{sT0}, v{t}
    v_add_u32 v{t+2}, {QL}, v{t+1}
    v_add_u32 v{t+1}, {sa}, v{t+1}
    ds_read_b128 v[{AQ}:{AQ+3}], v{t+2}
    """)
    for n in range(9):
        p(f'ds_read_b128 v[{AK+4*n}:{AK+4*n+3}], v{t+1} offset:{n*1024}')
    p(f"""
    v_and_b32 v{t+3}, 15, v1
    v_lshrrev_b32 v{t+4}, 5, v1
    v_lshl_add_u32 v{t+3}, v{t+4}, 4, v{t+3}
    v_lshlrev_b32 v{t+3}, 4, v{t+3}
    v_add_u32 v{t+3}, s{sT0}, v{t+3}
    v_add_u32 v{t+3}, {sb}, v{t+3}
    s_sub_u32 s{sNMIN}, 8, s{sW}
    s_cmp_eq_u32 s{sQB}, 0
    s_cselect_b32 s{sNMIN}, s{sNMIN}, 0
    v_and_b32 v{t+5}, 31, v1
    v_lshlrev_b32 v{t+4}, 2, v{t+4}
    v_sub_u32 v{t+5}, v{t+5}, v{t+4}
    v_mov_b32 v{t+6}, {hexf(NEG)}
    v_mov_b32 v{t+7}, 0
    """)
    for r in range(16):
        p(f'v_mov_b32 v{AV+r}, 0x3f803f80')
    for b in range(2):
        for q in range(8):
            rr = b*8+q
            p(f'v_cmp_le_i32 s[{sP0+2*q}:{sP0+2*q+1}], {(rr & 3)+8*(rr >> 2)}, v{t+5}')
        for q in range(8):
            rr = b*8+q
            p(f'v_cndmask_b32 v{ABD+rr}, v{t+6}, v{t+7}, s[{sP0+2*q}:{sP0+2*q+1}]')
            p(f'v_cndmask_b32 v{ABO+rr}, v{t+7}, v{t+6}, s[{sP0+2*q}:{sP0+2*q+1}]')
    def init_S():
        L = newlabel('inits')
        p(f's_cmp_eq_u32 s{sNMIN}, 0\ns_cbranch_scc1 {L}')
        for r in range(32):
            p(f'v_mov_b32 v{AS+r}, v{t+6}')
        p(f'{L}:')
    def qk(n, C):
        S = AS + 16*(n & 1)
        L = newlabel('qk')
        p(f's_cmp_gt_u32 s{sNMIN}, {n}\ns_cbranch_scc1 {L}')
        p(f'v_mfma_f32_32x32x16_bf16 v[{S}:{S+15}], v[{AK+4*n}:{AK+4*n+3}], v[{AQ}:{AQ+3}], {C}')
        p(f'{L}:')
    def blk(b): return f'v[{b}:{b+15}]'
    init_S()
    M = t+8
    p(f'v_mov_b32 v{M}, v{t+6}')
    p('s_waitcnt lgkmcnt(0)')
    def c1(n): return blk(ABO) if n == 0 else (blk(ABD) if n == 8 else '0')
    def maxtile(n):
        S = AS + 16*(n & 1)
        for q in range(8):
            p(f'v_max3_f32 v{M}, v{M}, v{S+2*q}, v{S+2*q+1}')
    qk(0, c1(0))
    for n in range(1, 9):
        qk(n, c1(n))
        if n == 1: p('s_nop 7\ns_nop 3')
        else: p('s_nop 1')
        maxtile(n-1)
    p('s_nop 7\ns_nop 3')
    maxtile(8)
    p(f"""
    v_mov_b32 v{t+9}, v{M}
    s_nop 1
    v_permlane32_swap_b32 v{M}, v{t+9}
    v_max_f32 v{M}, v{M}, v{t+9}
    v_sub_f32 v{M}, 0, v{M}
    """)
    L = newlabel('fx')
    p(f's_cmp_lg_u32 s{sROLE}, 0\ns_cbranch_scc1 {L}')
    p('s_waitcnt vmcnt(0)')
    emit_signal(p, f"""
    s_lshl_b32 s{sT4}, s{sR}, 3
    s_add_u32 s{sT4}, s{sT4}, s{sC}
    s_lshl_b32 s{sT4}, s{sT4}, 2
    s_add_u32 s{sT4}, s{sT4}, s{sW}
    s_lshl_b32 s{sT4}, s{sT4}, 2
    s_add_u32 s{sT4}, s{sT4}, {FX_OFF}
    """, CEP)
    p(f'{L}:')
    for r in range(16):
        p(f'v_mov_b32 v{ANM+r}, v{M}')
    for r in range(0, 16, 2):
        p(f'v_pk_add_f32 v[{ABD+r}:{ABD+r+1}], v[{ABD+r}:{ABD+r+1}], v[{ANM}:{ANM+1}]')
        p(f'v_pk_add_f32 v[{ABO+r}:{ABO+r+1}], v[{ABO+r}:{ABO+r+1}], v[{ANM}:{ANM+1}]')
    init_S()
    def c2(n): return blk(ABO) if n == 0 else (blk(ABD) if n == 8 else blk(ANM))
    def vread(n):
        b = AV + 8*(n & 1)
        p('s_mov_b32 exec_lo, 0xffff\ns_mov_b32 exec_hi, 0xffff')
        p(f'ds_read_b128 v[{b}:{b+3}], v{t+3} offset:{n*1024}')
        p(f'ds_read_b128 v[{b+4}:{b+7}], v{t+3} offset:{n*1024+512}')
        p('s_mov_b64 exec, -1')
    def soft(n):
        S = AS + 16*(n & 1)
        for r in range(16):
            p(f'v_exp_f32 v{AE+r}, v{S+r}')
        for q in range(8):
            p(f'v_cvt_pk_bf16_f32 v{AP+q}, v{AE+2*q}, v{AE+2*q+1}')
    def pv(n):
        b = AV + 8*(n & 1)
        C = '0' if n == 0 else blk(AO)
        p('s_waitcnt lgkmcnt(0)')
        p(f'v_mfma_f32_32x32x16_bf16 {blk(AO)}, v[{b}:{b+3}], v[{AP}:{AP+3}], {C}')
        p(f'v_mfma_f32_32x32x16_bf16 {blk(AO)}, v[{b+4}:{b+7}], v[{AP+4}:{AP+7}], {blk(AO)}')
    qk(0, c2(0))
    for n in range(9):
        vread(n)
        if n < 8: qk(n+1, c2(n+1))
        if n == 0: p('s_nop 7\ns_nop 3')
        soft(n)
        pv(n)
    p('s_nop 7\ns_nop 7')
    p(f'v_rcp_f32 v{t+9}, v{AO+8}')
    p('s_nop 0')
    for r in range(0, 8, 2):
        p(f'v_pk_mul_f32 v[{AO+r}:{AO+r+1}], v[{AO+r}:{AO+r+1}], v[{t+8}:{t+9}] op_sel:[0,1] op_sel_hi:[1,1]')
    for q in range(4):
        p(f'v_cvt_pk_bf16_f32 v{AP+q}, v{AO+2*q}, v{AO+2*q+1}')
    p(f"""
    s_lshl_b32 s{sT0}, s{sQB}, 3
    s_add_u32 s{sT0}, s{sT0}, s{sW}
    s_lshl_b32 s{sT0}, s{sT0}, 5
    s_add_u32 s{sT0}, s{sT0}, s{sHEAD}
    s_lshl_b32 s{sT0}, s{sT0}, 10
    s_add_u32 s{sT0}, s{sT0}, {O_OFF}
    buffer_store_dwordx4 v[{AP}:{AP+3}], v{t}, {srd(S_WS)}, s{sT0} offen{sc()}
    s_cmp_eq_u32 s{sROLE}, 0
    s_cbranch_scc1 L_ATT_RET_C
    s_cmp_eq_u32 s{sROLE}, 1
    s_cbranch_scc1 L_ATT_RET_A
    s_branch L_ATT_RET_B
    """)
CEP = 13

VA_B1, VW64N, VW64P, VABLK, VA_A1, VWQ, VAB3, VW3A, VW3B, VXCAP, VL16 = range(2, 13)
VRS, VMR = 14, 15
VX, VX1, ACCS, ACC, FR, TMP = 16, 24, 32, 48, 112, 176
sRW, sCW = 68, 69
sK2 = 96
sLG = 98
def blk(b): return f'v[{b}:{b+15}]'
def q4(b): return f'v[{b}:{b+3}]'
def pr(b): return f'v[{b}:{b+1}]'

def compute_setup(p):
    m, h, li, g, t0, t1 = 48, 49, 50, 51, 52, 53
    p('L_COMPUTE:')
    stamp(p, 0, 110)
    p(f's_mov_b32 s{sROLE}, 0')
    L = newlabel('ep')
    p(f"""
    s_or_b32 s{sT0}, s2, s{sW}
    s_cmp_lg_u32 s{sT0}, 0
    s_cbranch_scc1 {L}
    s_mov_b32 s{sT0}, {EP_OFF}
    buffer_load_dword v{t0}, off, {srd(S_WS)}, s{sT0} sc1
    s_waitcnt vmcnt(0)
    v_xor_b32 v{t0}, 0x9e3779b9, v{t0}
    s_mov_b32 s{sT1}, 0x85ebca6b
    v_mul_lo_u32 v{t0}, v{t0}, s{sT1}
    v_add_u32 v{t0}, 0x01234567, v{t0}
    v_max_u32 v{t0}, 1, v{t0}
    s_mov_b64 exec, 1
    buffer_store_dword v{t0}, off, {srd(S_WS)}, s{sT0} sc1
    buffer_store_dword v{t0}, off, {srd(S_DBG)}, 0 sc1
    s_mov_b64 exec, -1
    {L}:
    """)
    lane_vals(p, m, h, li, g)
    p(f"""
    s_lshr_b32 s{sRW}, s{sW}, 1
    s_and_b32 s{sCW}, s{sW}, 1
    v_lshlrev_b32 v{VL16}, 4, v1
    """)
    p(f"""
    s_lshl_b32 s{sT0}, s{sRW}, 5
    s_add_u32 s{sT0}, s{sT0}, 2
    s_sub_u32 s{sT1}, s{sT0}, s{sSH}
    v_add_u32 v{t0}, s{sT1}, v{m}
    v_and_b32 v{t1}, 15, v{t0}
    v_xor_b32 v{t1}, v{t1}, v{h}
    v_lshlrev_b32 v{t1}, 4, v{t1}
    v_lshl_add_u32 v{VA_B1}, v{t0}, 8, v{t1}
    """)
    p(f"""
    v_add_u32 v{t0}, s{sT0}, v{m}
    s_and_b32 s{sT1}, s{sC}, 1
    s_lshl_b32 s{sT1}, s{sT1}, 3
    s_lshl_b32 s{sT2}, s{sCW}, 2
    s_add_u32 s{sT1}, s{sT1}, s{sT2}
    v_and_b32 v{t1}, 15, v{t0}
    v_xor_b32 v{t1}, s{sT1}, v{t1}
    v_lshlrev_b32 v{t1}, 4, v{t1}
    v_lshl_add_u32 v{VXCAP}, v{t0}, 8, v{t1}
    v_lshl_add_u32 v{VXCAP}, v{h}, 3, v{VXCAP}
    """)
    tr_lanepart(p, VW64N, m, h, li, g, t0, t1, 8, 128, sCW, 'w64')
    tr_lanepart(p, VW64P, m, h, li, g, t0, t1, 4, 128, sCW, 'w64')
    p(f"""
    s_lshl_b32 s{sT0}, s{sRW}, 13
    v_add_u32 v{VABLK}, s{sT0}, v{VL16}
    v_add_u32 v{VAB3}, s{sT0}, v{VL16}
    """)
    p(f"""
    s_lshl_b32 s{sT0}, s{sW}, 5
    v_add_u32 v{t0}, s{sT0}, v{m}
    v_lshrrev_b32 v{t1}, 1, v{t0}
    v_and_b32 v{t1}, 7, v{t1}
    v_xor_b32 v{t1}, v{t1}, v{h}
    v_lshlrev_b32 v{t1}, 4, v{t1}
    v_lshl_add_u32 v{VA_A1}, v{t0}, 7, v{t1}
    """)
    tr_lanepart(p, VWQ, m, h, li, g, t0, t1, 8, 192, None, None)
    p(f's_lshl_b32 s{sT1}, s{sCW}, 1')
    tr_lanepart(p, VW3A, m, h, li, g, t0, t1, 4, 256, sT1, 'w3')
    p(f"""
    v_xor_b32 v{VW3B}, 64, v{VW3A}
    s_mov_b32 s{sK2}, {hexf(C_GELU2)}
    s_mov_b32 s{sK2+1}, {hexf(C_GELU2)}
    s_mov_b32 s{sLG}, {hexf(-LOG2E)}
    s_mov_b32 s{sLG+1}, {hexf(-LOG2E)}
    """)

def step64(p, i, natural, acc, first):
    sa, sb = slot_addr('A', i), slot_addr('B', i)
    va, vw = TMP, TMP+1
    if natural:
        p(f'v_add_u32 v{va}, {sa}, v{VA_B1}')
        for ks in range(8):
            p(f'v_xor_b32 v{TMP+2+ks}, {ks<<5}, v{va}')
        p(f'v_add_u32 v{vw}, {sb}, v{VW64N}')
    else:
        p(f'v_add_u32 v{va}, {sa}, v{VABLK}')
        p(f'v_add_u32 v{vw}, {sb}, v{VW64P}')
    d2 = 512 if natural else 1024
    def rd(ks):
        f = FR + 8*(ks & 3)
        if natural: p(f'ds_read_b128 {q4(f)}, v{TMP+2+ks}')
        else: p(f'ds_read_b128 {q4(f)}, v{va} offset:{ks*1024}')
        p(f'ds_read_b64_tr_b16 {pr(f+4)}, v{vw} offset:{ks*2048}')
        p(f'ds_read_b64_tr_b16 {pr(f+6)}, v{vw} offset:{ks*2048+d2}')
    def mm(ks):
        f = FR + 8*(ks & 3)
        C = '0' if (first and ks == 0) else blk(acc)
        p(f'v_mfma_f32_32x32x16_bf16 {blk(acc)}, {q4(f+4)}, {q4(f)}, {C}')
    for ks in range(4): rd(ks)
    for ks in range(8):
        outstanding = min(8, ks+4) - ks
        p(f's_waitcnt lgkmcnt({3*(outstanding-1)})')
        mm(ks)
        if ks+4 < 8: rd(ks+4)

def xcapture(p, i):
    L = newlabel('xcap')
    t = STEPS[i]['t']
    p(f's_lshr_b32 s{sT0}, s{sC}, 1\ns_cmp_lg_u32 s{sT0}, {t}\ns_cbranch_scc1 {L}')
    p(f'v_add_u32 v{TMP}, {slot_addr("A", i)}, v{VXCAP}')
    for sg in range(2):
        for q in range(2):
            p(f'v_xor_b32 v{TMP+1}, {(2*sg+q)<<4}, v{TMP}')
            p(f'ds_read_b64 {pr(VX+4*sg+2*q)}, v{TMP+1}')
    p('s_waitcnt lgkmcnt(0)')
    p(f'{L}:')

def gelu_pairs(p, z, n, k1, tmp):
    for i in range(n): p(f'v_pk_mul_f32 {pr(tmp+2*i)}, {pr(z+2*i)}, {pr(z+2*i)}')
    for i in range(n): p(f'v_pk_fma_f32 {pr(tmp+2*i)}, {pr(tmp+2*i)}, s[{sK2}:{sK2+1}], {pr(k1)}')
    for i in range(n): p(f'v_pk_mul_f32 {pr(tmp+2*i)}, {pr(tmp+2*i)}, {pr(z+2*i)}')
    for i in range(2*n): p(f'v_exp_f32 v{tmp+i}, v{tmp+i}')
    for i in range(n): p(f'v_pk_add_f32 {pr(tmp+2*i)}, {pr(tmp+2*i)}, 1.0 op_sel_hi:[1,0]')
    for i in range(2*n): p(f'v_rcp_f32 v{tmp+i}, v{tmp+i}')
    for i in range(n): p(f'v_pk_mul_f32 {pr(z+2*i)}, {pr(z+2*i)}, {pr(tmp+2*i)}')

def ln_fold_T(p, acc, cs, st):
    for i in range(8):
        p(f'v_pk_mul_f32 {pr(cs+2*i)}, {pr(cs+2*i)}, {pr(st)} op_sel:[0,1] op_sel_hi:[1,1]')
    for i in range(8):
        p(f'v_pk_fma_f32 {pr(acc+2*i)}, {pr(acc+2*i)}, {pr(st)}, {pr(cs+2*i)} op_sel_hi:[1,0,1] neg_lo:[0,0,1] neg_hi:[0,0,1]')

def pack(p, dst, src, n):
    for i in range(n): p(f'v_cvt_pk_bf16_f32 v{dst+i}, v{src+2*i}, v{src+2*i+1}')

def ws_store(p, data, soff, imm=0):
    p(f'buffer_store_dwordx4 {q4(data)}, v{VL16}, {srd(S_WS)}, s{soff} offen offset:{imm}{sc()}')

def signal_compute(p, base, e0, e1sh, e1):
    p('s_waitcnt vmcnt(0)')
    emit_signal(p, f"""
    s_lshl_b32 s{sT4}, s{e0}, {e1sh}
    s_add_u32 s{sT4}, s{sT4}, s{e1}
    s_lshl_b32 s{sT4}, s{sT4}, 2
    s_add_u32 s{sT4}, s{sT4}, s{sW}
    s_lshl_b32 s{sT4}, s{sT4}, 2
    s_add_u32 s{sT4}, s{sT4}, {base}
    """, CEP)

def epi_b1(p):
    m, h = TMP+40, TMP+41
    cs, st, tv, k1 = TMP, TMP+16, TMP+18, TMP+20
    g = TMP+24
    p(f"""
    v_and_b32 v{m}, 31, v1
    v_lshrrev_b32 v{h}, 5, v1
    s_lshl_b32 s{sT0}, s{sRW}, 5
    s_add_u32 s{sT0}, s{sT0}, 2
    v_add_u32 v{tv}, s{sT0}, v{m}
    v_lshlrev_b32 v{tv}, 2, v{tv}
    v_add_u32 v{tv}, {TBL}, v{tv}
    s_lshl_b32 s{sT1}, s{sSH}, 2
    v_subrev_u32 v{tv+1}, s{sT1}, v{tv}
    ds_read_b32 v{VRS}, v{tv} offset:0
    ds_read_b32 v{VMR}, v{tv} offset:512
    ds_read_b32 v{st}, v{tv+1} offset:1024
    ds_read_b32 v{st+1}, v{tv+1} offset:1536
    s_lshl_b32 s{sT1}, s{sCW}, 7
    v_lshlrev_b32 v{tv}, 4, v{h}
    v_add_u32 v{tv}, s{sT1}, v{tv}
    v_add_u32 v{tv}, {T_CS}, v{tv}
    """)
    for q in range(4): p(f'ds_read_b128 {q4(cs+4*q)}, v{tv} offset:{32*q}')
    Lp = newlabel('epoll'); Ld = newlabel('epolld')
    p(f"""
    s_mov_b32 s{sT5}, 0x10000
    {Lp}:
    buffer_load_dword v{CEP}, off, {srd(S_DBG)}, 0 sc1
    s_waitcnt vmcnt(0)
    v_readfirstlane_b32 s{sEP}, v{CEP}
    s_cmp_lg_u32 s{sEP}, 0
    s_cbranch_scc1 {Ld}
    s_sub_u32 s{sT5}, s{sT5}, 1
    s_cmp_eq_u32 s{sT5}, 0
    s_cbranch_scc0 {Lp}
    {Ld}:
    v_mov_b32 v{k1+2}, {T_EP}
    ds_write_b32 v{k1+2}, v{CEP}
    v_mov_b32 v{k1}, {hexf(C_GELU1)}
    v_mov_b32 v{k1+1}, {hexf(C_GELU1)}
    s_waitcnt lgkmcnt(0)
    """)
    ln_fold_T(p, ACC, cs, st)
    gelu_pairs(p, ACC, 8, k1, g)
    pack(p, g, ACC, 8)
    p(f"""
    s_lshl_b32 s{sT0}, s{sR}, 6
    s_lshl_b32 s{sT1}, s{sRW}, 5
    s_add_u32 s{sT0}, s{sT0}, s{sT1}
    s_sub_u32 s{sT0}, s{sT0}, s{sSH}
    v_add_u32 v{m}, s{sT0}, v{m}
    v_cmp_gt_u32 vcc, 2048, v{m}
    """)
    for i in range(8): p(f'v_cndmask_b32 v{g+i}, 0, v{g+i}, vcc')
    p(f"""
    s_lshl_b32 s{sT0}, s{sR}, 1
    s_add_u32 s{sT0}, s{sT0}, s{sRW}
    s_lshl_b32 s{sT0}, s{sT0}, 5
    s_lshl_b32 s{sT1}, s{sC}, 2
    s_add_u32 s{sT0}, s{sT0}, s{sT1}
    s_lshl_b32 s{sT1}, s{sCW}, 1
    s_add_u32 s{sT0}, s{sT0}, s{sT1}
    s_lshl_b32 s{sT0}, s{sT0}, 10
    s_add_u32 s{sT1}, s{sT0}, {G_OFF}
    """)
    ws_store(p, g, sT1, 0); ws_store(p, g+4, sT1, 1024)

def pipe_step(p, i, kind, first, last_of_task):
    sa, sb = slot_addr('A', i), slot_addr('B', i)
    va, vw, vw2 = TMP, TMP+1, TMP+2
    X, Y = FR, FR+16
    if kind == 'A1':
        p(f'v_add_u32 v{va}, {sa}, v{VA_A1}')
        for ks in range(4): p(f'v_xor_b32 v{TMP+4+ks}, {ks<<5}, v{va}')
        p(f'v_add_u32 v{vw}, {sb}, v{VWQ}')
        nrd = 7
        def rd(ks):
            f = X if (ks & 1) == 0 else Y
            p(f'ds_read_b128 {q4(f)}, v{TMP+4+ks}')
            for b in range(3):
                p(f'ds_read_b64_tr_b16 {pr(f+4+4*b)}, v{vw} offset:{ks*3072+b*64}')
                p(f'ds_read_b64_tr_b16 {pr(f+6+4*b)}, v{vw} offset:{ks*3072+b*64+768}')
        def mm(ks, zero):
            f = X if (ks & 1) == 0 else Y
            for b in range(3):
                a = ACC+16*b; C = '0' if zero else blk(a)
                if b < 2: p(f'v_mfma_f32_32x32x16_bf16 {blk(a)}, {q4(f+4+4*b)}, {q4(f)}, {C}')
                else:     p(f'v_mfma_f32_32x32x16_bf16 {blk(a)}, {q4(f)}, {q4(f+4+4*b)}, {C}')
    else:
        p(f'v_add_u32 v{va}, {sa}, v{VAB3}')
        p(f'v_add_u32 v{vw}, {sb}, v{VW3A}')
        p(f'v_add_u32 v{vw2}, {sb}, v{VW3B}')
        nrd = 6
        def rd(ks):
            f = X if (ks & 1) == 0 else Y
            p(f'ds_read_b128 {q4(f)}, v{va} offset:{ks*1024}')
            p(f'ds_read_b128 {q4(f+4)}, v{va} offset:{4096+ks*1024}')
            for cb, v in enumerate((vw, vw2)):
                p(f'ds_read_b64_tr_b16 {pr(f+8+4*cb)}, v{v} offset:{ks*4096}')
                p(f'ds_read_b64_tr_b16 {pr(f+10+4*cb)}, v{v} offset:{ks*4096+2048}')
        def mm(ks, zero):
            f = X if (ks & 1) == 0 else Y
            for rb in range(2):
                for cb in range(2):
                    a = ACC+16*(2*rb+cb); C = '0' if zero else blk(a)
                    p(f'v_mfma_f32_32x32x16_bf16 {blk(a)}, {q4(f+8+4*cb)}, {q4(f+4*rb)}, {C}')
    rd(0)
    if not first: mm(3, False)
    rd(1)
    p(f's_waitcnt lgkmcnt({nrd})'); mm(0, first)
    rd(2)
    p(f's_waitcnt lgkmcnt({nrd})'); mm(1, False)
    rd(3)
    p(f's_waitcnt lgkmcnt({nrd})'); mm(2, False)
    p('s_waitcnt lgkmcnt(0)')
    return mm

def epi_a1(p):
    m, h = TMP+60, TMP+61
    cs, st, tv = TMP, TMP+16, TMP+18
    pk = TMP+24
    p(f"""
    v_and_b32 v{m}, 31, v1
    v_lshrrev_b32 v{h}, 5, v1
    s_lshl_b32 s{sT0}, s{sW}, 5
    v_add_u32 v{tv}, s{sT0}, v{m}
    v_lshlrev_b32 v{tv}, 2, v{tv}
    v_add_u32 v{tv}, {TBL}, v{tv}
    ds_read_b32 v{st}, v{tv} offset:0
    ds_read_b32 v{st+1}, v{tv} offset:512
    v_lshlrev_b32 v{tv+1}, 4, v{h}
    v_add_u32 v{tv+1}, {T_CS}, v{tv+1}
    """)
    p(f"""
    s_lshl_b32 s{sT0}, s{sRA}, 2
    s_add_u32 s{sT0}, s{sT0}, s{sW}
    s_lshl_b32 s{sT1}, s{sHP}, 7
    s_add_u32 s{sT1}, s{sT1}, s{sT0}
    s_lshl_b32 s{sT1}, s{sT1}, 10
    s_add_u32 s{sT2}, s{sT1}, {Q_OFF}
    s_add_u32 s{sT3}, s{sT2}, 65536
    """)
    for b in range(2):
        for q in range(4): p(f'ds_read_b128 {q4(cs+4*q)}, v{tv+1} offset:{b*128+32*q}')
        p('s_waitcnt lgkmcnt(0)')
        if b == 0:
            p(f'v_mul_f32 v{st+4}, {hexf(QSCALE)}, v{st}\nv_mul_f32 v{st+5}, {hexf(QSCALE)}, v{st+1}')
            ln_fold_T(p, ACC, cs, st+4)
        else:
            ln_fold_T(p, ACC+16, cs, st)
        pack(p, pk+8*b, ACC+16*b, 8)
        if b == 1:
            p(f's_add_u32 s{sT2}, s{sT2}, {K_OFF-Q_OFF}\ns_add_u32 s{sT3}, s{sT3}, {K_OFF-Q_OFF}')
        ws_store(p, pk+8*b, sT2); ws_store(p, pk+8*b+4, sT3)
    a = ACC+32
    rs, mr, c1 = TMP, TMP+44, TMP+16
    p(f"""
    s_lshl_b32 s{sT0}, s{sW}, 7
    v_lshlrev_b32 v{tv}, 4, v{h}
    v_add_u32 v{tv}, s{sT0}, v{tv}
    v_add_u32 v{tv}, {TBL}, v{tv}
    v_lshlrev_b32 v{tv+1}, 2, v{m}
    v_add_u32 v{tv+1}, {T_CS+256}, v{tv+1}
    """)
    for q in range(4):
        p(f'ds_read_b128 {q4(rs+4*q)}, v{tv} offset:{32*q}')
        p(f'ds_read_b128 {q4(mr+4*q)}, v{tv} offset:{512+32*q}')
    p(f'ds_read_b32 v{c1}, v{tv+1}')
    p('s_waitcnt lgkmcnt(0)')
    for i in range(8):
        p(f'v_pk_mul_f32 {pr(mr+2*i)}, {pr(mr+2*i)}, {pr(c1)} op_sel_hi:[1,0]')
    for i in range(8):
        p(f'v_pk_fma_f32 {pr(a+2*i)}, {pr(a+2*i)}, {pr(rs+2*i)}, {pr(mr+2*i)} neg_lo:[0,0,1] neg_hi:[0,0,1]')
    pv_ = TMP+24
    pack(p, pv_, a, 8)
    p(f"""
    v_lshrrev_b32 v{tv}, 4, v{m}
    v_lshlrev_b32 v{tv}, 16, v{tv}
    v_and_b32 v{tv+1}, 15, v{m}
    v_lshl_add_u32 v{tv+1}, v{h}, 4, v{tv+1}
    v_lshl_add_u32 v{tv}, v{tv+1}, 4, v{tv}
    s_add_u32 s{sT2}, s{sT1}, {V_OFF}
    buffer_store_dwordx4 {q4(pv_)}, v{tv}, {srd(S_WS)}, s{sT2} offen offset:0{sc()}
    buffer_store_dwordx4 {q4(pv_+4)}, v{tv}, {srd(S_WS)}, s{sT2} offen offset:512{sc()}
    """)

def unpack_bf16(p, dst, src, n):
    for i in range(n):
        p(f'v_lshlrev_b32 v{dst+2*i}, 16, v{src+i}')
        p(f'v_and_b32 v{dst+2*i+1}, 0xffff0000, v{src+i}')

def blk64_soff(p, base, KB):
    p(f"""
    s_lshl_b32 s{sT0}, s{sR}, 1
    s_add_u32 s{sT0}, s{sT0}, s{sRW}
    s_mul_i32 s{sT0}, s{sT0}, {KB}
    s_lshl_b32 s{sT1}, s{sC}, 2
    s_add_u32 s{sT0}, s{sT0}, s{sT1}
    s_lshl_b32 s{sT1}, s{sCW}, 1
    s_add_u32 s{sT0}, s{sT0}, s{sT1}
    s_lshl_b32 s{sT0}, s{sT0}, 10
    s_add_u32 s{sT1}, s{sT0}, {base}
    """)

def epi_b2(p):
    x = TMP
    unpack_bf16(p, x, VX, 8)
    for i in range(8):
        p(f'v_pk_fma_f32 {pr(x+2*i)}, {pr(x+2*i)}, {pr(VRS)}, {pr(VRS)} op_sel:[0,0,1] op_sel_hi:[1,0,1] neg_lo:[0,0,1] neg_hi:[0,0,1]')
    for i in range(8):
        p(f'v_pk_add_f32 {pr(x+2*i)}, {pr(x+2*i)}, {pr(ACC+2*i)}')
    pack(p, VX1, x, 8)
    blk64_soff(p, X1_OFF, 32)
    ws_store(p, VX1, sT1, 0); ws_store(p, VX1+4, sT1, 1024)

def epi_b3(p):
    m, h = TMP+60, TMP+61
    cs, st, tv, k1, g = TMP, TMP+16, TMP+18, TMP+20, TMP+24
    p(f"""
    v_and_b32 v{m}, 31, v1
    v_lshrrev_b32 v{h}, 5, v1
    s_lshl_b32 s{sT0}, s{sRW}, 6
    v_add_u32 v{tv}, s{sT0}, v{m}
    v_lshlrev_b32 v{tv}, 2, v{tv}
    v_add_u32 v{tv}, {TBL}, v{tv}
    s_lshl_b32 s{sT1}, s{sCW}, 8
    v_lshlrev_b32 v{tv+1}, 4, v{h}
    v_add_u32 v{tv+1}, s{sT1}, v{tv+1}
    v_add_u32 v{tv+1}, {T_CS}, v{tv+1}
    v_mov_b32 v{k1}, {hexf(C_GELU1)}
    v_mov_b32 v{k1+1}, {hexf(C_GELU1)}
    s_lshl_b32 s{sT0}, s{sR3}, 2
    s_lshl_b32 s{sT1}, s{sRW}, 1
    s_add_u32 s{sT0}, s{sT0}, s{sT1}
    s_mul_i32 s{sT0}, s{sT0}, 112
    s_lshl_b32 s{sT1}, s{sC3}, 3
    s_add_u32 s{sT0}, s{sT0}, s{sT1}
    s_lshl_b32 s{sT1}, s{sCW}, 2
    s_add_u32 s{sT0}, s{sT0}, s{sT1}
    s_lshl_b32 s{sT0}, s{sT0}, 10
    s_add_u32 s{sT2}, s{sT0}, {H2_OFF}
    """)
    for rb in range(2):
        for cb in range(2):
            a = ACC+16*(2*rb+cb)
            p(f'ds_read_b32 v{st}, v{tv} offset:{rb*128}')
            p(f'ds_read_b32 v{st+1}, v{tv} offset:{512+rb*128}')
            for q in range(4): p(f'ds_read_b128 {q4(cs+4*q)}, v{tv+1} offset:{cb*128+32*q}')
            p('s_waitcnt lgkmcnt(0)')
            ln_fold_T(p, a, cs, st)
            gelu_pairs(p, a, 8, k1, g)
            pk = g+16+8*((2*rb+cb) & 1)
            pack(p, pk, a, 8)
            p(f's_add_u32 s{sT3}, s{sT2}, {(rb*112+2*cb)*1024}')
            ws_store(p, pk, sT3, 0); ws_store(p, pk+4, sT3, 1024)

def epi_final(p):
    x1, x, t = TMP, TMP+16, TMP+32
    y = ACC
    unpack_bf16(p, x1, VX1, 8)
    for i in range(8): p(f'v_pk_add_f32 {pr(y+2*i)}, {pr(y+2*i)}, {pr(x1+2*i)}')
    for i in range(8): p(f'v_pk_mul_f32 {pr(t+2*i)}, {pr(y+2*i)}, s[{sLG}:{sLG+1}]')
    for i in range(16): p(f'v_exp_f32 v{t+i}, v{t+i}')
    for i in range(8): p(f'v_pk_add_f32 {pr(t+2*i)}, {pr(t+2*i)}, 1.0 op_sel_hi:[1,0]')
    for i in range(16): p(f'v_rcp_f32 v{t+i}, v{t+i}')
    unpack_bf16(p, x, VX, 8)
    for i in range(8): p(f'v_pk_mul_f32 {pr(y+2*i)}, {pr(y+2*i)}, {pr(t+2*i)}')
    for i in range(8): p(f'v_pk_fma_f32 {pr(y+2*i)}, {pr(y+2*i)}, {pr(ACCS+2*i)}, {pr(x+2*i)}')
    pack(p, t, y, 8)
    p('s_nop 1')
    for sg in range(2):
        b = t+4*sg
        p(f'v_permlane32_swap_b32 v{b}, v{b+2}')
        p(f'v_permlane32_swap_b32 v{b+1}, v{b+3}')
    m, h = TMP+60, TMP+61
    p(f"""
    v_and_b32 v{m}, 31, v1
    v_lshrrev_b32 v{h}, 5, v1
    v_lshlrev_b32 v{m}, 10, v{m}
    v_lshl_add_u32 v{m}, v{h}, 4, v{m}
    s_lshl_b32 s{sT0}, s{sR}, 16
    s_lshl_b32 s{sT1}, s{sRW}, 15
    s_add_u32 s{sT0}, s{sT0}, s{sT1}
    s_lshl_b32 s{sT1}, s{sC}, 7
    s_add_u32 s{sT0}, s{sT0}, s{sT1}
    s_lshl_b32 s{sT1}, s{sCW}, 6
    s_add_u32 s{sT0}, s{sT0}, s{sT1}
    buffer_store_dwordx4 {q4(t)}, v{m}, {srd(S_OUT)}, s{sT0} offen offset:0
    buffer_store_dwordx4 {q4(t+4)}, v{m}, {srd(S_OUT)}, s{sT0} offen offset:32
    """)

def emit_compute(p, nsteps):
    compute_setup(p)
    barrier(p, 0, -1)
    pend = None
    i = 0
    b3_first, b3_last = IDX['B3'], IDX['A3']-1
    def sig(name):
        if name == 'FG': signal_compute(p, FG_OFF, sR, 3, sC)
        if name == 'FQ': signal_compute(p, FQ_OFF, sHP, 4, sRA)
        if name == 'FH': signal_compute(p, FH_OFF, sR3, 4, sC3)
        if name == 'FO':
            p('s_waitcnt vmcnt(0)')
            emit_signal(p, f"""
            s_lshl_b32 s{sT4}, s{sQB}, 3
            s_add_u32 s{sT4}, s{sT4}, s{sW}
            s_lshl_b32 s{sT4}, s{sT4}, 5
            s_add_u32 s{sT4}, s{sT4}, s{sHEAD}
            s_lshl_b32 s{sT4}, s{sT4}, 2
            s_add_u32 s{sT4}, s{sT4}, {FO_OFF}
            """, CEP)
    while i < nsteps:
        s = STEPS[i]; task, t = s['task'], s['t']
        if t == 0 and i > 0:
            prev = STEPS[i-1]['task']
            if pend: pend(3, False); pend = None
            if prev == 'B1': epi_b1(p)
            if prev == 'A1': epi_a1(p)
            if prev == 'B2': epi_b2(p)
            if prev == 'B3':
                epi_b3(p)
                p('L_A3_ENTRY_C:')
        for name, st_ in SIGNAL_STEP.items():
            if st_ == i and name != 'FX':
                if name == 'FH':
                    L = newlabel('fh'); p(f's_cmp_eq_u32 s{sIDLE}, 1\ns_cbranch_scc1 {L}'); sig(name); p(f'{L}:')
                else: sig(name)
        if task == 'B1':
            xcapture(p, i); step64(p, i, True, ACC, t == 0)
        elif task in ('B2', 'B4'):
            step64(p, i, False, ACC, t == 0)
        elif task == 'A3':
            step64(p, i, False, ACCS, t == 0)
        elif task in ('A1', 'B3'):
            pend = pipe_step(p, i, task, t == 0, False)
        elif task == 'A2':
            p('s_branch L_ATT\nL_ATT_RET_C:')
            if nsteps > b3_first:
                p(f's_cmp_eq_u32 s{sIDLE}, 1\ns_cbranch_scc1 L_IDLE_C')
        barrier(p, 0, i)
        i += 1
    last = STEPS[nsteps-1]['task']
    if pend: pend(3, False)
    if nsteps == len(STEPS): epi_final(p)
    else:
        {'B1': epi_b1, 'A1': epi_a1, 'B2': epi_b2, 'B3': epi_b3}.get(last, lambda p: None)(p)
        if last == 'B3': p('L_A3_ENTRY_C:')
    if CFG['dbg_stamps']:
        stamp(p, 0, 111)
        p('s_waitcnt vmcnt(0)')
        stamp(p, 0, 112)
        p('s_waitcnt lgkmcnt(0)')
        p('s_barrier')
        L = newlabel('dump')
        p(f's_cmp_lg_u32 s{sW}, 0\ns_cbranch_scc1 {L}')
        p(f'v_lshlrev_b32 v250, 2, v1\ns_lshl_b32 s{sT0}, s2, 11\ns_add_u32 s{sT0}, s{sT0}, {ST_OFF}')
        for q in range(6):
            p(f'v_add_u32 v251, {ST_BASE+q*256}, v250')
            p('ds_read_b32 v252, v251')
            p('s_waitcnt lgkmcnt(0)')
            p(f'buffer_store_dword v252, v250, {srd(S_WS)}, s{sT0} offen offset:{q*256}')
        p(f'{L}:')
    p('s_branch L_END')
    if nsteps > b3_first:
        p('L_IDLE_C:')
        sig('FO')
        p('s_barrier')
        if nsteps > b3_last:
            p('s_barrier')
            p('s_branch L_A3_ENTRY_C')
        else:
            p('s_branch L_END')

def generate(stop_task=None):
    nsteps = len(STEPS)
    if stop_task:
        nxt = {'B1': 'A1', 'A1': 'B2', 'B2': 'A2', 'A2': 'B3', 'B3': 'A3', 'A3': 'B4'}[stop_task]
        nsteps = IDX[nxt]
    p = Prog()
    emit_prologue(p)
    emit_compute(p, nsteps)
    emit_loader(p, 'A', nsteps)
    emit_loader(p, 'B', nsteps)
    if nsteps > IDX['A2']:
        emit_attention(p)
    p('L_END:')
    p('s_endpgm')
    nfix = p.fix_hazards()
    hdr = open('cdna_kernels/%s.s.ref' % NAME).read().split('\n')
    head = [l for l in hdr if l.startswith(';') and '@launch' not in l and 'Override launch' not in l and 'Harness parses' not in l][:12]
    out = '\n'.join(head) + '\n'
    pre = CFG.get('pre')
    if pre:
        out += f'; @launch kernel=pre_kernel grid=(256,1,1) block=(256,1,1) lds=0\n'
        out += f'; @launch kernel={NAME}_kernel grid=(256,1,1) block=(512,1,1) lds={LDS_BYTES}\n'
    else:
        out += f'; @launch grid=(256,1,1) block=(512,1,1) lds={LDS_BYTES}\n'
    out += f""".amdgcn_target "amdgcn-amd-amdhsa--gfx950"
.text
.globl {NAME}_kernel
.p2align 8
.type {NAME}_kernel,@function
{NAME}_kernel:
"""
    out += p.text()
    if pre:
        q = Prog()
        q('s_cmp_ge_u32 s2, 256\ns_cbranch_scc1 L_PEND')
        if pre in ('touch', 'touchw', 'touchc'):
            q("""
            s_load_dwordx16 s[4:19], s[0:1], 0
            s_getpc_b64 s[24:25]
            s_and_b32 s24, s24, 0xffffff00
            s_lshr_b32 s3, s2, 3
            v_lshlrev_b32 v1, 7, v0
            s_waitcnt lgkmcnt(0)
            """)
            if pre in ('touch', 'touchw'):
                for (lo, nbytes) in [(4, 2097152), (6, 1572864), (8, 524288), (12, 524288), (14, 524288), (16, 1835008), (18, 1835008)]:
                    per = nbytes//32
                    n = -(-per//32768)
                    for u in range(n):
                        q(f's_mul_i32 s20, s3, {per}\nv_add_u32 v2, s20, v1\nv_add_u32 v2, {u*32768}, v2\nv_min_u32 v2, {nbytes-4}, v2')
                        q(f'global_load_dword v3, v2, s[{lo}:{lo+1}]')
            if pre in ('touch', 'touchc'):
                q('s_sub_u32 s24, s24, 0xF000\ns_subb_u32 s25, s25, 0')
                q('s_lshl_b32 s20, s3, 11\nv_and_b32 v2, 15, v0\nv_lshlrev_b32 v2, 7, v2\nv_add_u32 v2, s20, v2')
                q('global_load_dword v3, v2, s[24:25]')
            q('s_waitcnt vmcnt(0)')
        q('L_PEND:\ns_endpgm')
        q.fix_hazards()
        out += '.globl pre_kernel\n.p2align 8\n.type pre_kernel,@function\npre_kernel:\n' + q.text()
        out += """.section .rodata,"a"
.p2align 6
.amdhsa_kernel pre_kernel
  .amdhsa_next_free_vgpr 8
  .amdhsa_next_free_sgpr 32
  .amdhsa_accum_offset 8
  .amdhsa_group_segment_fixed_size 0
  .amdhsa_kernarg_size 88
  .amdhsa_user_sgpr_count 2
  .amdhsa_user_sgpr_kernarg_segment_ptr 1
  .amdhsa_system_sgpr_workgroup_id_x 1
.end_amdhsa_kernel
"""
    out += f""".section .rodata,"a"
.p2align 6
.amdhsa_kernel {NAME}_kernel
  .amdhsa_next_free_vgpr 256
  .amdhsa_next_free_sgpr 102
  .amdhsa_accum_offset 256
  .amdhsa_group_segment_fixed_size 0
  .amdhsa_kernarg_size 88
  .amdhsa_user_sgpr_count 2
  .amdhsa_user_sgpr_kernarg_segment_ptr 1
  .amdhsa_system_sgpr_workgroup_id_x 1
.end_amdhsa_kernel
"""
    return out, nfix

if __name__ == '__main__':
    stop = sys.argv[2] if len(sys.argv) > 2 and sys.argv[2] != 'all' else None
    for a in sys.argv[3:]:
        k_, v_ = a.split('='); CFG[k_] = eval(v_)
    out, nfix = generate(stop)
    open(sys.argv[1], 'w').write(out)
    print('written', sys.argv[1], 'lines', out.count('\n'), 'hazard nops', nfix)
```
